```python
import torch

def _softmax(x, axis=-1):
    return torch.softmax(x, dim=axis)
def _gelu(x):
    return torch.nn.functional.gelu(x, approximate="tanh")
def _silu(x):
    return torch.nn.functional.silu(x)
def _sigmoid(x):
    return torch.sigmoid(x)
def _layernorm(x, axis=-1, eps=1e-5):
    m = x.mean(dim=axis, keepdim=True)
    v = x.var(dim=axis, keepdim=True, unbiased=False)
    return (x - m) / torch.sqrt(v + eps)
def _scatter_add(tgt, idx, src, axis=0):
    return tgt.clone().index_add_(axis, idx, src)
def _segment_sum(src, seg, n):
    out = torch.zeros((n,) + src.shape[1:], dtype=src.dtype)
    return out.index_add_(0, seg, src)
def _pad(x, pw):
    flat = tuple(v for pair in reversed(pw) for v in pair)
    return torch.nn.functional.pad(x, flat)

kernel_name = 'concat_heads__gqa_block_cached__mha_block_cached__near_ridge'

def setup_inputs():

    _w = (lambda a: (lambda t: t.to(torch.bfloat16) if t.is_floating_point() else t)(torch.as_tensor(a)))
    def _A_setup():
        B, Sq, D = 16, 80, 576
        Hq, Hkv, Sk, Dh = 32, 16, 512, 128
        assert Hq % Hkv == 0, (Hq, Hkv)
        return {
            "x": _w((lambda *s: torch.randn(*s, dtype=torch.bfloat16) * 0.8)(B, Sq, D)),
            "k_cache": _w((lambda *s: torch.randn(*s, dtype=torch.bfloat16) * 0.8)(B, Hkv, Sk, Dh)),
            "v_cache": _w((lambda *s: torch.randn(*s, dtype=torch.bfloat16) * 0.05)(B, Hkv, Sk, Dh)),
            "wq": _w((lambda *s: torch.randn(*s, dtype=torch.bfloat16) * 0.8)(D, Hq * Dh) * (D ** -0.5)),
            "wo": _w((lambda *s: torch.randn(*s, dtype=torch.bfloat16) * 0.05)(Hq * Dh, D) * ((Hq * Dh) ** -0.5)),
        }
    _A_in = _A_setup()

    def _B_setup():
        B, Sq, D = 16, 80, 576
        H, Sk, Dh = 32, 512, 128
        return {
            "x": _w((lambda *s: torch.randn(*s, dtype=torch.bfloat16) * 0.8)(B, Sq, D)),
            "k_cache": _w((lambda *s: torch.randn(*s, dtype=torch.bfloat16) * 0.8)(B, H, Sk, Dh)),
            "v_cache": _w((lambda *s: torch.randn(*s, dtype=torch.bfloat16) * 0.05)(B, H, Sk, Dh)),
            "wq": _w((lambda *s: torch.randn(*s, dtype=torch.bfloat16) * 0.8)(D, H * Dh) * (D ** -0.5)),
            "wo": _w((lambda *s: torch.randn(*s, dtype=torch.bfloat16) * 0.05)(H * Dh, D) * ((H * Dh) ** -0.5)),
        }
    _B_in = _B_setup()

    return {
        "A_x": _A_in["x"],
        "A_k_cache": _A_in["k_cache"],
        "A_v_cache": _A_in["v_cache"],
        "A_wq": _A_in["wq"],
        "A_wo": _A_in["wo"],
        "B_x": _B_in["x"],
        "B_k_cache": _B_in["k_cache"],
        "B_v_cache": _B_in["v_cache"],
        "B_wq": _B_in["wq"],
        "B_wo": _B_in["wo"],
    }

def reference(A_x, A_k_cache, A_v_cache, A_wq, A_wo, B_x, B_k_cache, B_v_cache, B_wq, B_wo):
    def _A_ref(x, k_cache, v_cache, wq, wo):
        B, Sq, D = x.shape
        Hq, Dh = 32, 128
        Hkv = k_cache.shape[1]
        rep = Hq // Hkv
        q = (lambda x, *d: x.permute(*d))((x @ wq).reshape(B, Sq, Hq, Dh), 0, 2, 1, 3)
        k = (lambda x, n, axis: torch.repeat_interleave(x, n, dim=axis))(k_cache, rep, axis=1)
        v = (lambda x, n, axis: torch.repeat_interleave(x, n, dim=axis))(v_cache, rep, axis=1)
        scores = torch.einsum("bhqd,bhkd->bhqk", q, k) * (Dh ** -0.5)
        p = _softmax(scores, axis=-1)
        o = torch.einsum("bhqk,bhkd->bhqd", p, v)
        return (lambda x, *d: x.permute(*d))(o, 0, 2, 1, 3).reshape(B, Sq, Hq * Dh) @ wo

    def _B_ref(x, k_cache, v_cache, wq, wo):
        B, Sq, D = x.shape
        H, Dh = 32, 128
        q = (lambda x, *d: x.permute(*d))((x @ wq).reshape(B, Sq, H, Dh), 0, 2, 1, 3)
        scores = torch.einsum("bhqd,bhkd->bhqk", q, k_cache) * (Dh ** -0.5)
        p = _softmax(scores, axis=-1)
        o = torch.einsum("bhqk,bhkd->bhqd", p, v_cache)
        return (lambda x, *d: x.permute(*d))(o, 0, 2, 1, 3).reshape(B, Sq, H * Dh) @ wo

    a = _A_ref(A_x, A_k_cache, A_v_cache, A_wq, A_wo)
    b = _B_ref(B_x, B_k_cache, B_v_cache, B_wq, B_wo)
    return torch.concatenate([a, b], axis=-1)
```

```python
import re

def _expand(tok):
    tok = tok.strip()
    neg = tok.startswith("-")
    if neg: tok = tok[1:]
    m = re.fullmatch(r"abs\((.*)\)", tok)
    if m: tok = m.group(1)
    m = re.fullmatch(r"([vas])(\d+)", tok)
    if m: return [m.group(1) + m.group(2)]
    m = re.fullmatch(r"([vas])\[(\d+):(\d+)\]", tok)
    if m: return [m.group(1) + str(i) for i in range(int(m.group(2)), int(m.group(3)) + 1)]
    if tok in ("vcc", "exec", "m0", "scc"): return [tok]
    if tok in ("vcc_lo", "vcc_hi"): return ["vcc"]
    if tok in ("exec_lo", "exec_hi"): return ["exec"]
    return []

TRANS = ("v_exp_f32", "v_log_f32", "v_rcp_f32", "v_rsq_f32", "v_sqrt_f32", "v_sin_f32", "v_cos_f32", "v_rcp_iflag_f32")

class Ins:
    __slots__ = ("text", "mn", "cls", "wr", "rd", "srcC", "dst", "passes", "ws", "ab")
    def __init__(self, text):
        self.text = text
        t = text.split(";")[0].strip()
        parts = t.split(None, 1)
        mn = parts[0]; self.mn = mn
        rest = parts[1] if len(parts) > 1 else ""
        ops = [o.strip() for o in rest.split(",")] if rest else []
        opsm = []
        for o in ops:
            opsm.append(o.split()[0] if o else o)
        R = [_expand(o) for o in opsm]
        self.wr = set(); self.rd = set(); self.srcC = set(); self.dst = set(); self.passes = 0; self.ws = 1; self.ab = set()
        mods = rest
        if mn == "s_nop":
            self.cls = "nop"; self.ws = int(opsm[0], 0) + 1
        elif mn.startswith("v_mfma"):
            self.cls = "mfma"
            self.wr = set(R[0]); self.dst = set(R[0]); self.ab = set(R[1]) | set(R[2]); self.srcC = set(R[3])
            self.rd = self.ab | self.srcC
            self.passes = 8 if "32x32" in mn else 4
        elif mn.startswith("v_"):
            self.cls = "trans" if any(mn.startswith(x) for x in TRANS) else "valu"
            if mn.startswith("v_permlane") and "swap" in mn:
                self.cls = "permlane"; self.wr = set(R[0]) | set(R[1]); self.rd = set(self.wr)
            elif mn.startswith("v_cmp"):
                self.wr = set(R[0]); self.rd = set().union(*R[1:]) if len(R) > 1 else set()
                if mn.startswith("v_cmpx"): self.wr |= {"exec"}
            elif mn.startswith("v_readfirstlane") or mn.startswith("v_readlane"):
                self.cls = "readlane"; self.wr = set(R[0]); self.rd = set().union(*R[1:])
            elif mn.startswith("v_add_co") or mn.startswith("v_sub_co") or mn.startswith("v_addc_co"):
                self.wr = set(R[0]) | set(R[1]); self.rd = set().union(*R[2:])
            else:
                self.wr = set(R[0]); self.rd = set().union(*R[1:]) if len(R) > 1 else set()
                if mn.startswith("v_fmac") or mn.startswith("v_pk_fmac") or mn.startswith("v_dot2c"): self.rd |= self.wr
                if mn.startswith("v_cndmask") and len(R) == 3: self.rd |= {"vcc"}
        elif mn.startswith("ds_read") or mn.startswith("ds_bpermute") or mn.startswith("ds_swizzle"):
            self.cls = "ds"; self.wr = set(R[0]); self.rd = set().union(*R[1:])
        elif mn.startswith("ds_write"):
            self.cls = "ds"; self.rd = set().union(*R)
        elif mn.startswith("buffer_load") or mn.startswith("global_load"):
            if " lds" in " " + mods + " " and mn.startswith("buffer_load") and re.search(r"\blds\b", mods):
                self.cls = "dma"; self.rd = set().union(*R) | {"m0"}
            else:
                self.cls = "vmem"; self.wr = set(R[0]); self.rd = set().union(*R[1:])
        elif mn.startswith("buffer_store") or mn.startswith("global_store"):
            self.cls = "vstore"; self.rd = set().union(*R)
            self.dst = set(R[0]) if mn.startswith("buffer_store") else set(R[1])
        elif mn.startswith("buffer_atomic") or mn.startswith("global_atomic"):
            self.cls = "vmem"; self.rd = set().union(*R)
            if re.search(r"\bsc0\b", mods): self.wr = set(R[0])
        elif mn.startswith("buffer_wbl2") or mn.startswith("buffer_inv"):
            self.cls = "vmem"
        elif mn.startswith("s_"):
            self.cls = "salu"
            if mn.startswith("s_cmp") or mn.startswith("s_bitcmp"):
                self.rd = set().union(*R) if R else set(); self.wr = {"scc"}
            elif mn.startswith("s_cbranch") or mn in ("s_branch", "s_barrier", "s_endpgm", "s_waitcnt", "s_sleep", "s_setprio", "s_setpc_b64", "s_call_b64", "s_swappc_b64"):
                self.cls = "ctl"
                if mn in ("s_setpc_b64",): self.rd = set(R[0])
                if mn in ("s_call_b64",): self.wr = set(R[0])
            elif mn.startswith("s_load") or mn.startswith("s_memtime") or mn.startswith("s_memrealtime") or mn.startswith("s_buffer_load"):
                self.cls = "smem"; self.wr = set(R[0]); self.rd = set().union(*R[1:]) if len(R) > 1 else set()
            else:
                self.wr = set(R[0]) if R else set(); self.rd = set().union(*R[1:]) if len(R) > 1 else set()
                if "saveexec" in mn: self.wr |= {"exec"}; self.rd |= {"exec"}
        else:
            raise ValueError("unknown instruction: " + text)

def is_valu(i): return i.cls in ("valu", "trans", "permlane", "readlane")
def vregs(s): return {r for r in s if r[0] in "va" and r not in ("vcc",)}
def sregs(s): return {r for r in s if (r[0] == "s" and r != "scc") or r == "vcc"}

def need(p, c):
    n = 0
    pw = p.wr
    if is_valu(p):
        pv = vregs(pw)
        if c.cls == "mfma" and pv & c.rd: n = max(n, 2)
        if c.cls == "permlane" and pv & c.rd: n = max(n, 2)
        if c.cls == "readlane" and pv & c.rd: n = max(n, 1)
        if p.cls == "trans" and is_valu(c) and c.cls != "trans" and pv & c.rd: n = max(n, 1)
        if p.cls == "trans" and c.cls == "trans" and pv & c.rd: n = max(n, 1)
        ps = sregs(pw)
        if ps:
            if is_valu(c) and ps & c.rd: n = max(n, 2)
            if c.cls in ("vmem", "dma", "vstore") and ps & c.rd: n = max(n, 5)
            if c.cls == "ctl" and c.mn.startswith("s_cbranch_vcc") and "vcc" in ps: n = max(n, 5)
            if c.cls in ("salu",) and ps & c.rd: n = max(n, 4)
        if "exec" in pw:
            if c.cls == "mfma": n = max(n, 4)
            if c.cls in ("permlane", "readlane"): n = max(n, 4)
            if is_valu(c): n = max(n, 2)
    if p.cls == "mfma":
        big = {4: 8, 8: 12}[p.passes]; ovl = {4: 6, 8: 10}[p.passes]; war = {4: 3, 8: 7}[p.passes]
        if c.cls == "mfma":
            if p.dst & c.ab: n = max(n, big)
            if p.dst & c.srcC and not (p.dst == c.srcC and p.passes == c.passes): n = max(n, ovl)
            if p.dst & c.dst and not (p.dst == c.srcC): n = max(n, ovl)
        elif is_valu(c):
            if p.dst & (c.rd | c.wr): n = max(n, big)
            if p.srcC & c.wr: n = max(n, war)
        elif c.cls in ("ds", "vmem", "vstore", "dma"):
            if p.dst & (c.rd | c.wr): n = max(n, big)
    if p.cls == "salu" and "m0" in pw and c.cls == "dma": n = max(n, 1)
    if p.cls == "salu" and "exec" in pw and c.cls == "mfma": n = max(n, 1)
    if p.cls == "vstore" and len(p.dst) >= 3:
        if vregs(c.wr) & p.dst: n = max(n, 2 if is_valu(c) else 1)
    return n

LOOKBACK = 14

class Prog:
    def __init__(self):
        self.items = []
        self.nops = 0
        self.auto = True
    def raw(self, t): self.items.append(("t", t))
    def label(self, name): self.items.append(("l", name))
    def c(self, t): self.items.append(("t", "    ; " + t))
    def _recent(self):
        out = []
        for k, v in reversed(self.items):
            if k == "i":
                out.append(v)
                if len(out) >= LOOKBACK: break
        return out
    def __call__(self, text):
        ins = Ins(text)
        req = 0; dist = 0
        for p in self._recent():
            r = need(p, ins)
            if r - dist > req: req = r - dist
            dist += p.ws
            if dist >= 13: break
        while req > 0:
            k = min(req, 16)
            self.items.append(("i", Ins(f"s_nop {k-1}"))); self.nops += 1
            req -= k
        self.items.append(("i", ins))
        return ins
    def text(self):
        out = []
        for k, v in self.items:
            if k == "i": out.append("    " + v.text)
            elif k == "l": out.append(v + ":")
            else: out.append(v)
        return "\n".join(out) + "\n"
    def check_branches(self):
        idx = {v: n for n, (k, v) in enumerate(self.items) if k == "l"}
        errs = []
        for n, (k, v) in enumerate(self.items):
            if k != "i": continue
            if not (v.mn.startswith("s_cbranch") or v.mn in ("s_branch", "s_call_b64")): continue
            tgt = v.text.split()[-1]
            if tgt not in idx: continue
            tail = [x for kk, x in self.items[max(0, n - 40):n + 1] if kk == "i"][-LOOKBACK:]
            head = [x for kk, x in self.items[idx[tgt]:idx[tgt] + 60] if kk == "i"][:LOOKBACK]
            seq = tail + head
            for j in range(len(tail), len(seq)):
                dist = 0
                for i2 in range(j - 1, -1, -1):
                    if i2 < len(tail):
                        r = need(seq[i2], seq[j])
                        if r > dist: errs.append((v.text, seq[i2].text, seq[j].text, r, dist))
                    dist += seq[i2].ws
        return errs

def interleave(P, mfmas, fillers, lead=0):
    n = len(mfmas); f = len(fillers)
    done = 0
    for j, m in enumerate(mfmas):
        P(m)
        want = ((j + 1) * f) // n if j >= lead else 0
        if j == n - 1: want = f
        while done < want:
            x = fillers[done]; done += 1
            if callable(x): x()
            elif isinstance(x, (list, tuple)):
                for y in x:
                    y() if callable(y) else P(y)
            else: P(x)
```

```python
from asmlib import *

WREG = 40960
SLOT_K = [0, 16384]
SLOT_V = [8192, 24576]
STG = 16384
CSCALE = 0.08838834764831845 * 1.4426950408889634
BIAS = 7.0

import struct
def f2u(x): return struct.unpack("<I", struct.pack("<f", x))[0]

V_L = 0
V_XA = 1
V_WA = list(range(2, 10))
V_XG = 10
V_WG = [11, 12]
V_KA = list(range(13, 17))
V_KG = list(range(17, 21))
V_VG = [21, 22]
V_T = list(range(23, 32))
V_WG4 = [224, 225, 226, 227]
V_XG5 = [228, 229, 230, 231, 232]
V_XA2 = [1, 233]
KF = 32
S0 = 64
P0 = 104
NM = 124
LL = 144
VF = 164
ONES = 196
ET = 200
ACC = 64
def S(kt, qt): return S0 + (qt * 2 + kt) * 4
def vr(b, n=4): return f"v[{b}:{b+n-1}]"
def ar(b, n=4): return f"a[{b}:{b+n-1}]"
def Oa(dt, qt): return (dt * 5 + qt) * 4
def Qa(qt, s): return 160 + (qt * 4 + s) * 4
def XF(st, qt): return st * 52 + qt * 4
def WF(st, dt): return st * 52 + 20 + dt * 4

S_SRDX, S_SRDW, S_SRDK, S_SRDV, S_SRDO = 4, 8, 12, 16, 20
S_W, S_P, S_B, S_H = 24, 25, 26, 27
S_WB = 28
S_KOFF = 29
S_VOFF = 30
S_XG = [31, 32, 33]
S_XL = [34, 35, 36]
S_WGB = 37
S_WL = 38
S_KX = 39
S_KW = 40
S_T = list(range(41, 56))
S_CNT = 56
S_RET = 58
S_OB = 60
S_C = 61
S_MASK = 62

class VQ:
    def __init__(self): self.q = []
    def push(self, tag): self.q.append(tag)
    def wait(self, P, tag):
        if tag not in self.q: return None
        idx = max(i for i, t in enumerate(self.q) if t == tag)
        n = len(self.q) - 1 - idx
        assert n <= 63, n
        P(f"s_waitcnt vmcnt({n})")
        self.q = self.q[idx + 1:]
        return n

def gen_k1(P, nt=" nt", name="attn_kernel", stamps=False, opts={}):
    vq = VQ()
    P.raw(f".globl {name}\n.p2align 8\n.type {name},@function\n{name}:")
    P("s_cmp_ge_u32 s2, 256"); P("s_cbranch_scc1 L_k1_done")
    t = S_T
    P(f"s_and_b32 s{t[0]}, s2, 7")
    P(f"s_lshr_b32 s{t[1]}, s2, 3")
    P(f"s_and_b32 s{S_P}, s{t[1]}, 1")
    P(f"s_lshr_b32 s{t[1]}, s{t[1]}, 1")
    P(f"s_mul_i32 s{t[4]}, s{S_P}, 40")
    P(f"s_add_u32 s{t[5]}, s0, s{t[4]}"); P(f"s_addc_u32 s{t[6]}, s1, 0")
    assert t[5] % 2 == 0
    P(f"s_load_dwordx8 s[64:71], s[{t[5]}:{t[6]}], 0")
    P(f"s_load_dwordx2 s[72:73], s[0:1], 96")
    nst = [0]
    def stamp(grp="main"):
        if stamps and grp == opts.get("stgrp", "main") and nst[0] < 8:
            P(f"s_memrealtime s[{80+2*nst[0]}:{81+2*nst[0]}]"); nst[0] += 1
            if grp == "clk":
                P(f"s_memtime s[{80+2*nst[0]}:{81+2*nst[0]}]"); nst[0] += 1
    stamp(opts.get("stgrp", "main"))
    P(f"v_lshrrev_b32 v1, 6, v0"); P(f"v_and_b32 v{V_L}, 63, v0")
    P(f"v_readfirstlane_b32 s{S_W}, v1")
    P(f"s_and_b32 s{t[2]}, s{t[1]}, 3")
    P(f"s_lshr_b32 s{t[3]}, s{t[1]}, 2")
    P(f"s_add_u32 s{t[7]}, s{t[2]}, s{t[3]}"); P(f"s_and_b32 s{t[7]}, s{t[7]}, 3"); P(f"s_mul_i32 s{t[7]}, s{t[7]}, 9"); P(f"s_lshr_b32 s{t[7]}, s{t[7]}, 2")
    P(f"s_and_b32 s{t[8]}, s{t[0]}, 3"); P(f"s_lshl_b32 s{t[8]}, s{t[8]}, 2"); P(f"s_add_u32 s{t[2]}, s{t[2]}, s{t[8]}")
    P(f"s_lshr_b32 s{t[8]}, s{t[0]}, 2"); P(f"s_lshl_b32 s{t[8]}, s{t[8]}, 2"); P(f"s_add_u32 s{t[3]}, s{t[3]}, s{t[8]}")
    if opts.get("norot"): P(f"s_mov_b32 s{t[7]}, 0")
    P(f"s_lshl_b32 s{S_KX}, s{t[7]}, 7"); P(f"s_lshl_b32 s{S_KW}, s{t[7]}, 19")
    P(f"s_lshr_b32 s{t[8]}, s{S_W}, 1"); P(f"s_lshl_b32 s{S_B}, s{t[3]}, 1"); P(f"s_add_u32 s{S_B}, s{S_B}, s{t[8]}")
    P(f"s_and_b32 s{t[9]}, s{S_W}, 1"); P(f"s_lshl_b32 s{S_H}, s{t[2]}, 1"); P(f"s_add_u32 s{S_H}, s{S_H}, s{t[9]}")
    P(f"s_mul_i32 s{S_WB}, s{S_W}, {WREG}")
    P(f"s_cmp_eq_u32 s{S_P}, 0")
    P(f"s_cselect_b32 s{t[10]}, s{t[2]}, s{S_H}")
    P(f"s_add_u32 s{t[11]}, s{S_P}, 4"); P(f"s_lshl_b32 s{t[11]}, s{S_B}, s{t[11]}")
    P(f"s_add_u32 s{t[10]}, s{t[10]}, s{t[11]}"); P(f"s_lshl_b32 s{S_KOFF}, s{t[10]}, 17")
    P(f"s_mov_b32 s{S_VOFF}, s{S_KOFF}")
    P(f"s_lshl_b32 s{t[12]}, s{t[3]}, 1"); P(f"s_add_u32 s{t[12]}, s{t[12]}, s{t[8]}")
    P(f"s_mul_i32 s{S_XG[0]}, s{t[12]}, {80*1152}"); P(f"s_mul_i32 s{t[13]}, s{t[9]}, {40*1152}"); P(f"s_add_u32 s{S_XG[0]}, s{S_XG[0]}, s{t[13]}")
    P(f"s_add_u32 s{t[11]}, s{t[8]}, 2"); P(f"s_mul_i32 s{t[11]}, s{t[11]}, {WREG}"); P(f"s_mul_i32 s{t[13]}, s{t[9]}, 5120")
    P(f"s_add_u32 s{S_XL[0]}, s{t[11]}, s{t[13]}"); P(f"s_add_u32 s{S_XL[0]}, s{S_XL[0]}, {STG}")
    P(f"s_lshl_b32 s{S_WGB}, s{t[8]}, 17"); P(f"s_lshl_b32 s{t[10]}, s{S_H}, 8"); P(f"s_add_u32 s{S_WGB}, s{S_WGB}, s{t[10]}")
    P(f"s_mul_i32 s{S_WL}, s{t[9]}, {WREG}"); P(f"s_lshl_b32 s{t[10]}, s{t[8]}, 12"); P(f"s_add_u32 s{S_WL}, s{S_WL}, s{t[10]}")
    P(f"s_add_u32 s{S_WL}, s{S_WL}, {STG}")
    P(f"s_mul_i32 s{S_OB}, s{S_P}, 80"); P(f"s_mul_i32 s{t[10]}, s{S_B}, 5"); P(f"s_add_u32 s{S_OB}, s{S_OB}, s{t[10]}")
    P(f"s_lshl_b32 s{S_OB}, s{S_OB}, 7"); P(f"s_lshl_b32 s{t[10]}, s{S_H}, 2"); P(f"s_add_u32 s{S_OB}, s{S_OB}, s{t[10]}")
    P(f"s_lshl_b32 s{S_OB}, s{S_OB}, 10")
    P(f"s_mov_b32 s{S_C}, {f2u(CSCALE):#x}"); P(f"s_mov_b32 s{S_MASK}, 0x40004000")
    L = f"v{V_L}"; T = [f"v{x}" for x in V_T]
    P(f"v_lshrrev_b32 {T[0]}, 3, {L}")
    P(f"v_lshrrev_b32 {T[1]}, 4, {L}")
    P(f"v_and_b32 {T[3]}, 7, {L}"); P(f"v_xor_b32 {T[3]}, {T[3]}, {T[1]}"); P(f"v_lshlrev_b32 {T[3]}, 4, {T[3]}")
    P(f"v_mul_u32_u24 v{V_XG}, 1152, {T[0]}"); P(f"v_add_u32 v{V_XG}, v{V_XG}, {T[3]}")
    P(f"v_and_b32 {T[4]}, 15, {L}")
    P(f"v_lshrrev_b32 {T[5]}, 2, {T[4]}")
    P(f"v_lshrrev_b32 {T[2]}, 1, {T[4]}"); P(f"v_xor_b32 {T[2]}, {T[2]}, {T[1]}"); P(f"v_lshlrev_b32 {T[2]}, 4, {T[2]}")
    P(f"v_lshlrev_b32 v{V_XA2[0]}, 7, {T[4]}"); P(f"v_add_u32 v{V_XA2[0]}, v{V_XA2[0]}, {T[2]}")
    P(f"s_add_u32 s{t[10]}, s{t[8]}, 2"); P(f"s_mul_i32 s{t[10]}, s{t[10]}, {WREG}"); P(f"s_add_u32 s{t[10]}, s{t[10]}, {STG}")
    P(f"v_add_u32 v{V_XA2[0]}, s{t[10]}, v{V_XA2[0]}"); P(f"v_xor_b32 v{V_XA2[1]}, 64, v{V_XA2[0]}")
    P(f"v_lshlrev_b32 {T[2]}, 1, {T[1]}"); P(f"v_xor_b32 {T[2]}, {T[2]}, {T[4]}"); P(f"v_lshlrev_b32 {T[2]}, 4, {T[2]}")
    P(f"v_lshlrev_b32 v{V_WG[0]}, 13, {T[1]}"); P(f"v_add_u32 v{V_WG[0]}, v{V_WG[0]}, {T[2]}")
    P(f"v_xor_b32 v{V_WG[1]}, 0x80, v{V_WG[0]}")
    P(f"v_and_b32 {T[6]}, 3, {L}"); P(f"v_lshlrev_b32 {T[6]}, 3, {T[6]}")
    P(f"v_lshlrev_b32 {T[2]}, 3, {T[1]}"); P(f"v_add_u32 {T[2]}, {T[2]}, {T[5]}"); P(f"v_lshlrev_b32 {T[2]}, 8, {T[2]}")
    P(f"v_and_b32 {T[3]}, 1, {T[1]}"); P(f"v_lshlrev_b32 {T[3]}, 2, {T[3]}"); P(f"v_or_b32 {T[3]}, {T[3]}, {T[5]}"); P(f"v_lshlrev_b32 {T[7]}, 5, {T[3]}")
    P(f"v_add_u32 {T[2]}, {T[2]}, {T[7]}"); P(f"v_add_u32 {T[2]}, {T[2]}, {T[6]}")
    P(f"s_mul_i32 s{t[10]}, s{t[9]}, {WREG}"); P(f"s_add_u32 s{t[10]}, s{t[10]}, {STG}")
    P(f"v_add_u32 v{V_WA[0]}, s{t[10]}, {T[2]}")
    for dt in range(1, 8): P(f"v_xor_b32 v{V_WA[dt]}, {dt*32}, v{V_WA[0]}")
    P(f"v_xor_b32 {T[2]}, {T[4]}, {T[1]}"); P(f"v_lshlrev_b32 {T[2]}, 4, {T[2]}")
    P(f"v_lshlrev_b32 {T[3]}, 8, {T[1]}"); P(f"v_add_u32 v{V_KG[0]}, {T[3]}, {T[2]}")
    for v in range(1, 4): P(f"v_xor_b32 v{V_KG[v]}, {64*v}, v{V_KG[0]}")
    P(f"v_lshlrev_b32 {T[7]}, 8, {T[4]}"); P(f"v_add_u32 {T[7]}, {T[7]}, {T[2]}"); P(f"v_add_u32 v{V_KA[0]}, s{S_WB}, {T[7]}")
    for s in range(1, 4): P(f"v_xor_b32 v{V_KA[s]}, {64*s}, v{V_KA[0]}")
    P(f"v_lshlrev_b32 {T[2]}, 1, {T[1]}"); P(f"v_xor_b32 {T[2]}, {T[2]}, {T[4]}"); P(f"v_lshlrev_b32 {T[2]}, 4, {T[2]}")
    P(f"v_add_u32 v{V_VG[0]}, {T[3]}, {T[2]}"); P(f"v_xor_b32 v{V_VG[1]}, 0x80, v{V_VG[0]}")
    P(f"v_lshlrev_b32 {T[2]}, 2, {T[1]}"); P(f"v_add_u32 {T[2]}, {T[2]}, {T[5]}"); P(f"v_and_b32 {T[3]}, 7, {T[2]}")
    P(f"v_lshlrev_b32 {T[2]}, 8, {T[2]}"); P(f"v_lshlrev_b32 {T[3]}, 5, {T[3]}"); P(f"v_add_u32 {T[2]}, {T[2]}, {T[3]}")
    P(f"v_add_u32 {T[2]}, {T[2]}, {T[6]}"); P(f"v_add_u32 {T[8]}, s{S_WB}, {T[2]}")
    for u in range(4):
        P(f"s_add_u32 s{t[10]}, s{S_WGB}, {u*32768}"); P(f"v_add_u32 v{V_WG4[u]}, s{t[10]}, v{V_WG[u>>1]}")
    for u in range(5):
        P(f"s_add_u32 s{t[10]}, s{t[9]}, {u}"); P(f"s_and_b32 s{t[10]}, s{t[10]}, 1"); P(f"s_lshl_b32 s{t[10]}, s{t[10]}, 6")
        P(f"v_xor_b32 v{V_XG5[u]}, s{t[10]}, v{V_XG}")
        P(f"s_add_u32 s{t[10]}, s{S_XG[0]}, {u*8*1152}"); P(f"v_add_u32 v{V_XG5[u]}, s{t[10]}, v{V_XG5[u]}")
    P("s_waitcnt lgkmcnt(0)")
    P(f"s_mov_b32 s{S_SRDX}, s64"); P(f"s_mov_b32 s{S_SRDX+1}, s65"); P(f"s_mov_b32 s{S_SRDX+2}, {16*80*1152}"); P(f"s_mov_b32 s{S_SRDX+3}, 0x20000")
    P(f"s_mov_b32 s{S_SRDW}, s70"); P(f"s_mov_b32 s{S_SRDW+1}, s71"); P(f"s_mov_b32 s{S_SRDW+2}, {576*8192}"); P(f"s_mov_b32 s{S_SRDW+3}, 0x20000")
    P(f"s_add_u32 s{t[10]}, s{S_P}, 25"); P(f"s_lshl_b32 s{t[10]}, 1, s{t[10]}")
    P(f"s_mov_b32 s{S_SRDK}, s66"); P(f"s_mov_b32 s{S_SRDK+1}, s67"); P(f"s_mov_b32 s{S_SRDK+2}, s{t[10]}"); P(f"s_mov_b32 s{S_SRDK+3}, 0x20000")
    P(f"s_mov_b32 s{S_SRDV}, s68"); P(f"s_mov_b32 s{S_SRDV+1}, s69"); P(f"s_mov_b32 s{S_SRDV+2}, s{t[10]}"); P(f"s_mov_b32 s{S_SRDV+3}, 0x20000")
    P(f"s_mov_b32 s{S_SRDO}, s72"); P(f"s_mov_b32 s{S_SRDO+1}, s73"); P(f"s_mov_b32 s{S_SRDO+2}, {2*80*128*1024}"); P(f"s_mov_b32 s{S_SRDO+3}, 0x20000")

    def dma_w(st_idx):
        buf = st_idx % 3
        out = []; tag = f"W{st_idx}"
        def dm(txt):
            def f(): P(txt); vq.push(tag)
            return f
        for u in range(4):
            out.append(f"s_add_u32 m0, s{S_WL}, {buf*8192 + u*1024}")
            out.append(dm(f"buffer_load_dwordx4 v{V_WG4[u]}, s[{S_SRDW}:{S_SRDW+3}], s{S_KW} offen lds"))
        out += [f"s_add_u32 s{S_KW}, s{S_KW}, 0x40000", [f"s_cmp_eq_u32 s{S_KW}, {18*0x40000}", f"s_cselect_b32 s{S_KW}, 0, s{S_KW}"]]
        return out
    def dma_x(D):
        bx = (D + 1) & 1
        out = []; tag = f"X{D}"
        def dm(txt):
            def f(): P(txt); vq.push(tag)
            return f
        for u in range(5):
            out.append(f"s_add_u32 m0, s{S_XL[0]}, {bx*10240 + u*1024}")
            out.append(dm(f"buffer_load_dwordx4 v{V_XG5[u]}, s[{S_SRDX}:{S_SRDX+3}], s{S_KX} offen lds"))
        out += [f"s_add_u32 s{S_KX}, s{S_KX}, 128", [f"s_cmp_eq_u32 s{S_KX}, 1152", f"s_cselect_b32 s{S_KX}, 0, s{S_KX}"]]
        return out
    def dma_kv(which, blk, slot):
        out = []
        srd = S_SRDK if which == "K" else S_SRDV
        off = S_KOFF if which == "K" else S_VOFF
        tag = f"{which}{blk}"
        def dm(txt):
            def f(): P(txt); vq.push(tag)
            return f
        for i in range(8):
            if i % 4 == 0:
                if i == 4: out.append(f"s_add_u32 s{off}, s{off}, 4096")
                out.append(f"s_add_u32 m0, s{S_WB}, {slot + (i>>2)*4096}")
            vg = V_KG[i & 3] if which == "K" else V_VG[i & 1]
            o = f" offset:{(i&3)*1024}" if i & 3 else ""
            out.append(dm(f"buffer_load_dwordx4 v{vg}, s[{srd}:{srd+3}], s{off} offen{o}{nt} lds"))
        out.append(f"s_add_u32 s{off}, s{off}, 4096")
        return out
    def run(l):
        for x in l:
            if callable(x): x()
            elif isinstance(x, list): run(x)
            else: P(x)
    def rd_stage(st_idx):
        buf = st_idx % 3; fs = st_idx & 1; D = st_idx >> 1; bx = (D + 1) & 1; hf = st_idx & 1
        out = []
        for qt in range(5):
            out.append(f"ds_read_b128 {ar(XF(fs, qt))}, v{V_XA2[hf]} offset:{bx*10240 + qt*2048}")
        for dt in range(8):
            out.append(f"ds_read_b64_tr_b16 {ar(WF(fs, dt), 2)}, v{V_WA[dt]} offset:{buf*8192}")
            out.append(f"ds_read_b64_tr_b16 {ar(WF(fs, dt)+2, 2)}, v{V_WA[dt]} offset:{buf*8192 + 1024}")
        return [out[0], out[5], out[6]] + out[1:5] + out[7:]

    P.c("phase 1 prologue")
    run(dma_x(0)); run(dma_w(0)); run(dma_w(1)); run(dma_x(1))
    kstep = int(opts.get("k0step", 5)); vstep = int(opts.get("v0step", 8))
    stamp("p1")
    vq.wait(P, "W0"); P("s_barrier")
    stamp("p1")
    run(rd_stage(0))
    NS = 18
    for st in range(NS):
        P.c(f"Q-proj step {st}")
        fs = st & 1
        mf = []
        for dt in range(8):
            for qt in range(5):
                a = ACC + (dt * 5 + qt) * 4
                c = "0" if st == 0 else vr(a)
                mf.append(f"v_mfma_f32_16x16x32_bf16 {vr(a)}, {ar(WF(fs, dt))}, {ar(XF(fs, qt))}, {c}")
        P("s_waitcnt lgkmcnt(0)")
        head = int(opts.get('head', 6))
        for m in mf[:head]: P(m)
        fill = []
        if st + 1 < NS:
            need_tags = [f"W{st+1}"] + ([f"X{(st+1)>>1}"] if (st + 1) % 2 == 0 else [])
            last = max(need_tags, key=lambda tg: max([i for i, x in enumerate(vq.q) if x == tg], default=-1))
            if not opts.get("nowait1"): vq.wait(P, last)
        if not opts.get("nobar1"): P("s_barrier")
        dm = []
        if st == 0: dm += dma_w(2)
        if st + 3 < NS and not opts.get("nodmaW"): dm += dma_w(st + 3)
        if st % 2 == 1 and (st + 3) // 2 < 9 and not opts.get("nodmaX"): dm += dma_x((st + 3) // 2)
        if st == kstep and not opts.get("nokv1"): dm += dma_kv("K", 0, SLOT_K[0])
        if st == vstep and not opts.get("nokv1"): dm += dma_kv("V", 0, SLOT_V[0])
        if st == 15 and not opts.get("nokv1"): dm += dma_kv("K", 1, SLOT_K[1])
        if st == 17 and not opts.get("nokv1"): dm += dma_kv("V", 1, SLOT_V[1])
        rd = rd_stage(st + 1) if st + 1 < NS else []
        if opts.get("nord1"): rd = []
        fill = []
        nd, nr = len(dm), len(rd)
        di = ri = 0
        rr = int(opts.get("rratio", 2))
        while di < nd or ri < nr:
            for _ in range(rr):
                if ri < nr: fill.append(rd[ri]); ri += 1
            if di < nd: fill.append(dm[di]); di += 1
        interleave(P, mf[head:], fill)
        if st in (0, 1, 2, 8, 17): stamp("p1")
        if st in (8, 9, 10, 11, 12, 13, 14): stamp("p2")
        if st in (9, 14): stamp("clk")
    stamp()
    if opts.get("p1only"):
        P("s_waitcnt vmcnt(0)"); P("s_endpgm")
    P.c("Q conversion")
    for dt in range(8): P(f"v_xor_b32 v{V_WA[dt]}, {dt*32}, {T[8]}") if dt else P(f"v_mov_b32 v{V_WA[0]}, {T[8]}")
    for qt in range(5):
        for s in range(4):
            A = ACC + ((2 * s) * 5 + qt) * 4; B = ACC + ((2 * s + 1) * 5 + qt) * 4
            for r in range(4): P(f"v_mul_f32 v{A+r}, s{S_C}, v{A+r}")
            for r in range(4): P(f"v_mul_f32 v{B+r}, s{S_C}, v{B+r}")
            P(f"v_cvt_pk_bf16_f32 v{A}, v{A}, v{A+1}"); P(f"v_cvt_pk_bf16_f32 v{A+1}, v{A+2}, v{A+3}")
            P(f"v_cvt_pk_bf16_f32 v{B}, v{B}, v{B+1}"); P(f"v_cvt_pk_bf16_f32 v{B+1}, v{B+2}, v{B+3}")
    for qt in range(5):
        for s in range(4):
            A = ACC + ((2 * s) * 5 + qt) * 4; B = ACC + ((2 * s + 1) * 5 + qt) * 4
            P(f"v_permlane32_swap_b32 v{A}, v{B}"); P(f"v_permlane32_swap_b32 v{A+1}, v{B+1}")
    for qt in range(5):
        for s in range(4):
            A = ACC + ((2 * s) * 5 + qt) * 4; B = ACC + ((2 * s + 1) * 5 + qt) * 4
            P(f"v_permlane16_swap_b32 v{A}, v{B}"); P(f"v_permlane16_swap_b32 v{A+1}, v{B+1}")
    for qt in range(5):
        for s in range(4):
            A = ACC + ((2 * s) * 5 + qt) * 4; B = ACC + ((2 * s + 1) * 5 + qt) * 4
            q = Qa(qt, s)
            P(f"v_accvgpr_write_b32 a{q}, v{A}"); P(f"v_accvgpr_write_b32 a{q+1}, v{A+1}")
            P(f"v_accvgpr_write_b32 a{q+2}, v{B}"); P(f"v_accvgpr_write_b32 a{q+3}, v{B+1}")
    for r in range(4): P(f"v_mov_b32 v{ONES+r}, 0x3f803f80")

    def rd_K(slot):
        return [f"ds_read_b128 {vr(KF + (kt*4+s)*4)}, v{V_KA[s]} offset:{slot + kt*4096}" for kt in range(2) for s in range(4)]
    def rd_V(slot):
        out = []
        for dt in range(8):
            out.append(f"ds_read_b64_tr_b16 {vr(VF + dt*4, 2)}, v{V_WA[dt]} offset:{slot}")
            out.append(f"ds_read_b64_tr_b16 {vr(VF + dt*4 + 2, 2)}, v{V_WA[dt]} offset:{slot + 4096}")
        return out
    def qk_mfmas(qt, first):
        out = []
        for kt in range(2):
            for s in range(4):
                d = S(kt, qt)
                c = (("0" if first else vr(NM + qt * 4)) if s == 0 else vr(d))
                out.append(f"v_mfma_f32_16x16x32_bf16 {vr(d)}, {vr(KF + (kt*4+s)*4)}, {ar(Qa(qt, s))}, {c}")
        return out
    def softmax_ops(qt, orreg, first_or):
        e = ET + (qt & 1) * 8
        out = []
        for kt in range(2):
            for r in range(4): out.append(f"v_exp_f32 v{e + kt*4 + r}, v{S(kt, qt) + r}")
            out.append(f"v_cvt_pk_bf16_f32 v{P0 + qt*4 + kt*2}, v{e + kt*4}, v{e + kt*4 + 1}")
            out.append(f"v_cvt_pk_bf16_f32 v{P0 + qt*4 + kt*2 + 1}, v{e + kt*4 + 2}, v{e + kt*4 + 3}")
        o = [out[0], out[1], out[2], out[3], out[6], out[4], out[7], out[5], out[8], out[9], out[10], out[11]]
        p = P0 + qt * 4
        if first_or:
            o.append(f"v_or3_b32 {orreg}, v{p}, v{p+1}, v{p+2}"); o.append(f"v_or_b32 {orreg}, {orreg}, v{p+3}")
        else:
            o.append(f"v_or3_b32 {orreg}, {orreg}, v{p}, v{p+1}"); o.append(f"v_or3_b32 {orreg}, {orreg}, v{p+2}, v{p+3}")
        return o
    def colmax(qt, dst, tmp):
        a = S(0, qt); b = S(1, qt)
        P(f"v_max3_f32 {dst}, v{a}, v{a+1}, v{a+2}"); P(f"v_max3_f32 {tmp}, v{a+3}, v{b}, v{b+1}")
        P(f"v_max3_f32 {dst}, {dst}, v{b+2}, v{b+3}"); P(f"v_max_f32 {dst}, {dst}, {tmp}")
        P(f"v_mov_b32 {tmp}, {dst}"); P(f"v_permlane32_swap_b32 {dst}, {tmp}"); P(f"v_max_f32 {dst}, {dst}, {tmp}")
        P(f"v_mov_b32 {tmp}, {dst}"); P(f"v_permlane16_swap_b32 {dst}, {tmp}"); P(f"v_max_f32 {dst}, {dst}, {tmp}")
    ORR = T[0]
    def merge(a, b):
        out = []; i = j = 0
        while i < len(a) or j < len(b):
            if i < len(a) and (j >= len(b) or i * max(len(b), 1) <= j * len(a)): out.append(a[i]); i += 1
            else: out.append(b[j]); j += 1
        return out
    def block(i, first=False, issue=True, last=False):
        par = i & 1
        P.c(f"block {i} QK")
        P("s_waitcnt lgkmcnt(0)")
        dmK = dma_kv("K", i + 2, SLOT_K[par]) if issue else []
        rdV = rd_V(SLOT_V[par])
        waitV = lambda: vq.wait(P, f"V{i}")
        for qt in range(5):
            fill = []
            if not first and qt > 0: fill += softmax_ops(qt - 1, ORR, qt == 1)
            if qt == 0: fill += dmK[:6]
            if qt == 1: fill = merge(fill, dmK[6:])
            if qt == 3: fill = [waitV] + merge(fill, rdV[:8])
            if qt == 4: fill = merge(fill, rdV[8:])
            interleave(P, qk_mfmas(qt, first), fill)
        if first:
            P.c("first block: establish the running max")
            for qt in range(5):
                colmax(qt, T[1], T[2])
                P(f"v_add_f32 {T[1]}, 0x{f2u(BIAS):x}, {T[1]}")
                for r in range(4): P(f"v_sub_f32 v{NM + qt*4 + r}, 0, {T[1]}")
                for kt in range(2):
                    for r in range(4): P(f"v_sub_f32 v{S(kt, qt) + r}, v{S(kt, qt) + r}, {T[1]}")
                run(softmax_ops(qt, ORR, qt == 0))
        else:
            run(softmax_ops(4, ORR, False))
            P(f"v_and_b32 {ORR}, s{S_MASK}, {ORR}")
            P(f"v_cmp_ne_u32 vcc, 0, {ORR}")
            lab = f"L_ok_{i}"
            P(f"s_cbranch_vccz {lab}")
            P(f"s_call_b64 s[{S_RET}:{S_RET+1}], L_rescale")
            P.label(lab)
        P.c(f"block {i} PV")
        P("s_waitcnt lgkmcnt(0)")
        dmV = dma_kv("V", i + 2, SLOT_V[par]) if issue else []
        mf = []
        for qt in range(5):
            for dt in range(8):
                o = Oa(dt, qt)
                c = "0" if first else ar(o)
                mf.append(f"v_mfma_f32_16x16x32_bf16 {ar(o)}, {vr(VF + dt*4)}, {vr(P0 + qt*4)}, {c}")
            c = "0" if first else vr(LL + qt * 4)
            mf.append(f"v_mfma_f32_16x16x32_bf16 {vr(LL + qt*4)}, {vr(ONES)}, {vr(P0 + qt*4)}, {c}")
        fill = list(dmV)
        tail = []
        if not last:
            tail = [lambda: vq.wait(P, f"K{i+1}")] + rd_K(SLOT_K[(i + 1) & 1])
        interleave(P, mf[:27], fill)
        interleave(P, mf[27:], tail)

    stamp()
    vq.wait(P, "K0"); run(rd_K(SLOT_K[0]))
    block(0, first=True)
    stamp()
    block(1)
    stamp()
    P(f"s_mov_b32 s{S_CNT}, 0")
    qsave = [x for x in vq.q]
    P.label("L_attn_loop")
    block(2); block(3)
    def shape(q, base): return [(x[0], int(x[1:]) - base) for x in q]
    assert shape(qsave, 2) == shape(vq.q, 4), (qsave, vq.q)
    P(f"s_add_u32 s{S_CNT}, s{S_CNT}, 1"); P(f"s_cmp_lt_u32 s{S_CNT}, 6"); P("s_cbranch_scc1 L_attn_loop")
    vq.q = [f"{x[0]}{int(x[1:]) - 4 + 14}" for x in vq.q]
    block(14, issue=False); block(15, issue=False, last=True)
    stamp(); stamp("clk")
    P.c("epilogue")
    for qt in range(5): P(f"v_rcp_f32 v{NM + qt}, v{LL + qt*4}")
    P(f"v_lshlrev_b32 {T[0]}, 4, {L}")
    n = 0
    for qt in range(5):
        P(f"s_add_u32 s{t[0]}, s{S_OB}, {qt*131072}")
        for s in range(4):
            e = S0 + (n % 4) * 8; n += 1
            for r in range(4): P(f"v_accvgpr_read_b32 v{e+r}, a{Oa(2*s, qt)+r}")
            for r in range(4): P(f"v_accvgpr_read_b32 v{e+4+r}, a{Oa(2*s+1, qt)+r}")
            for r in range(8): P(f"v_mul_f32 v{e+r}, v{e+r}, v{NM+qt}")
            P(f"v_cvt_pk_bf16_f32 v{e}, v{e}, v{e+1}"); P(f"v_cvt_pk_bf16_f32 v{e+1}, v{e+2}, v{e+3}")
            P(f"v_cvt_pk_bf16_f32 v{e+2}, v{e+4}, v{e+5}"); P(f"v_cvt_pk_bf16_f32 v{e+3}, v{e+6}, v{e+7}")
            o = f" offset:{s*1024}" if s else ""
            P(f"buffer_store_dwordx4 {vr(e)}, {T[0]}, s[{S_SRDO}:{S_SRDO+3}], s{t[0]} offen{o}")
    if stamps:
        P("s_waitcnt vmcnt(0)")
        stamp()
        P("s_waitcnt lgkmcnt(0)")
        for i in range(8): P(f"v_mov_b32 v{4+i}, s{80+2*min(i, nst[0]-1)}")
        P(f"s_lshl_b32 s{t[0]}, s2, 2"); P(f"s_add_u32 s{t[0]}, s{t[0]}, s{S_W}"); P(f"s_lshl_b32 s{t[0]}, s{t[0]}, 5")
        P(f"s_add_u32 s76, s72, 0x4000000"); P("s_addc_u32 s77, s73, 0"); P("s_mov_b32 s78, 0x100000"); P("s_mov_b32 s79, 0x20000")
        P(f"v_mov_b32 v12, s{t[0]}"); P(f"v_cmp_eq_u32 vcc, 0, {L}"); P("s_and_saveexec_b64 s[74:75], vcc")
        P("buffer_store_dwordx4 v[4:7], v12, s[76:79], 0 offen")
        P("buffer_store_dwordx4 v[8:11], v12, s[76:79], 0 offen offset:16")
    P.label("L_k1_done")
    P("s_endpgm")
    P.label("L_rescale")
    P("s_nop 7"); P("s_nop 7")
    for qt in range(5):
        colmax(qt, T[1], T[2])
        P(f"v_add_f32 {T[1]}, 0x{f2u(BIAS):x}, {T[1]}"); P(f"v_max_f32 {T[1]}, 0, {T[1]}")
        P(f"v_sub_f32 {T[2]}, 0, {T[1]}"); P(f"v_exp_f32 {T[2]}, {T[2]}")
        for r in range(4): P(f"v_sub_f32 v{NM + qt*4 + r}, v{NM + qt*4 + r}, {T[1]}")
        for kt in range(2):
            for r in range(4): P(f"v_sub_f32 v{S(kt, qt) + r}, v{S(kt, qt) + r}, {T[1]}")
        for r in range(4): P(f"v_mul_f32 v{LL + qt*4 + r}, v{LL + qt*4 + r}, {T[2]}")
        for dt in range(8):
            for r in range(4): P(f"v_accvgpr_read_b32 v{ET + r}, a{Oa(dt, qt) + r}")
            for r in range(4): P(f"v_mul_f32 v{ET + r}, v{ET + r}, {T[2]}")
            for r in range(4): P(f"v_accvgpr_write_b32 a{Oa(dt, qt) + r}, v{ET + r}")
        run(softmax_ops(qt, ORR, True))
    P("s_nop 7")
    P(f"s_setpc_b64 s[{S_RET}:{S_RET+1}]")

def desc(name, vgpr, accum, sgpr=100):
    return f""".section .rodata,"a"
.p2align 6
.amdhsa_kernel {name}
  .amdhsa_next_free_vgpr {vgpr}
  .amdhsa_next_free_sgpr {sgpr}
  .amdhsa_accum_offset {accum}
  .amdhsa_group_segment_fixed_size 0
  .amdhsa_kernarg_size 104
  .amdhsa_user_sgpr_count 2
  .amdhsa_user_sgpr_kernarg_segment_ptr 1
  .amdhsa_system_sgpr_workgroup_id_x 1
.end_amdhsa_kernel
"""
```

```python
from asmlib import *
from k1 import vr, ar, VQ, f2u

NBUF = 3
STAGE = 20480
LDS = NBUF * STAGE
NVGPR = 256
EX_OFF = 0x2000000

ACC = 32
BF = 128
AF = 160
V_OA = 1
V_WA = [2, 3, 4, 5, 6, 7]
V_OG = 8
V_WG = [9, 10, 11]
V_T = list(range(12, 32))
def A_(rt, nt): return ACC + (rt * 6 + nt) * 4
def BFr(s, rt): return BF + s * 16 + rt * 4
def AFr(s, nt): return AF + s * 24 + nt * 4

S_SRDO, S_SRDW, S_SRDX, S_SRDOUT, S_SRDD = 4, 8, 12, 16, 20
S_W, S_P, S_KQ, S_MT, S_N3 = 24, 25, 26, 27, 28
S_OG = [29, 30]
S_KS = 31
S_KW = 32
S_WGB = 33
S_T = list(range(40, 56))

def gen_k2(P, opts={}):
    name = "oproj_kernel"
    stamps = opts.get("stamps", False)
    vq = VQ()
    t = S_T
    P.raw(f".globl {name}\n.p2align 8\n.type {name},@function\n{name}:")
    P("s_cmp_ge_u32 s2, 240"); P("s_cbranch_scc1 L_k2_done")
    nst = [0]
    def stamp():
        if stamps and nst[0] < 8:
            P(f"s_memrealtime s[{80+2*nst[0]}:{81+2*nst[0]}]"); nst[0] += 1
    stamp()
    P(f"s_and_b32 s{t[0]}, s2, 7"); P(f"s_lshr_b32 s{S_P}, s{t[0]}, 2"); P(f"s_and_b32 s{S_KQ}, s{t[0]}, 3")
    P(f"s_lshr_b32 s{t[1]}, s2, 3")
    P(f"s_mul_hi_u32 s{S_MT}, s{t[1]}, 0x55555556"); P(f"s_mul_i32 s{t[2]}, s{S_MT}, 3"); P(f"s_sub_u32 s{S_N3}, s{t[1]}, s{t[2]}")
    P(f"s_mul_i32 s{t[4]}, s{S_P}, 40"); P(f"s_add_u32 s{t[6]}, s0, s{t[4]}"); P(f"s_addc_u32 s{t[7]}, s1, 0")
    assert t[6] % 2 == 0
    P(f"s_load_dwordx2 s[64:65], s[{t[6]}:{t[7]}], 32")
    P(f"s_load_dwordx4 s[68:71], s[0:1], 80")
    P(f"s_load_dwordx2 s[72:73], s[0:1], 96")
    P("v_lshrrev_b32 v1, 6, v0"); P("v_and_b32 v0, 63, v0"); P(f"v_readfirstlane_b32 s{S_W}, v1")
    T = [f"v{x}" for x in V_T]
    P(f"s_mul_i32 s{t[2]}, s{S_P}, 80"); P(f"s_lshl_b32 s{t[3]}, s{S_MT}, 3"); P(f"s_add_u32 s{t[2]}, s{t[2]}, s{t[3]}")
    P(f"s_lshl_b32 s{t[3]}, s{S_W}, 1"); P(f"s_add_u32 s{t[2]}, s{t[2]}, s{t[3]}")
    P(f"s_lshl_b32 s{t[2]}, s{t[2]}, 7"); P(f"s_lshl_b32 s{t[3]}, s{S_KQ}, 5"); P(f"s_add_u32 s{t[2]}, s{t[2]}, s{t[3]}")
    P(f"s_lshl_b32 s{S_OG[0]}, s{t[2]}, 10"); P(f"s_add_u32 s{S_OG[1]}, s{S_OG[0]}, {128*1024}")
    P(f"s_lshl_b32 s{S_KS}, s{t[1]}, 10"); P(f"s_mul_i32 s{S_KW}, s{t[1]}, {32*1152}")
    P(f"s_mul_i32 s{S_WGB}, s{S_KQ}, {1024*1152}"); P(f"s_mul_i32 s{t[2]}, s{S_N3}, 384"); P(f"s_add_u32 s{S_WGB}, s{S_WGB}, s{t[2]}")
    P(f"s_mul_i32 s{t[2]}, s{S_W}, {8*1152}"); P(f"s_add_u32 s{S_WGB}, s{S_WGB}, s{t[2]}")
    L = "v0"
    P(f"v_lshlrev_b32 v{V_OG}, 4, {L}")
    for u in range(3):
        P(f"v_add_u32 {T[0]}, {64*u}, {L}")
        P(f"v_mul_u32_u24 {T[1]}, 2731, {T[0]}"); P(f"v_lshrrev_b32 {T[1]}, 16, {T[1]}")
        P(f"v_mul_u32_u24 {T[2]}, 24, {T[1]}"); P(f"v_sub_u32 {T[2]}, {T[0]}, {T[2]}")
        P(f"v_lshrrev_b32 {T[3]}, 1, {T[1]}"); P(f"v_and_b32 {T[3]}, 3, {T[3]}"); P(f"v_lshlrev_b32 {T[3]}, 1, {T[3]}")
        P(f"v_xor_b32 {T[2]}, {T[2]}, {T[3]}"); P(f"v_lshlrev_b32 {T[2]}, 4, {T[2]}")
        P(f"v_mul_u32_u24 {T[1]}, 1152, {T[1]}"); P(f"v_add_u32 {T[1]}, {T[1]}, {T[2]}")
        P(f"v_add_u32 v{V_WG[u]}, s{S_WGB}, {T[1]}")
    P(f"s_lshr_b32 s{t[2]}, s{S_W}, 1"); P(f"s_lshl_b32 s{t[2]}, s{t[2]}, 12"); P(f"v_add_u32 v{V_OA}, s{t[2]}, v{V_OG}")
    P(f"v_lshrrev_b32 {T[0]}, 4, {L}"); P(f"v_and_b32 {T[1]}, 15, {L}"); P(f"v_lshrrev_b32 {T[1]}, 2, {T[1]}")
    P(f"v_lshlrev_b32 {T[2]}, 2, {T[0]}"); P(f"v_add_u32 {T[2]}, {T[2]}, {T[1]}")
    P(f"v_lshrrev_b32 {T[3]}, 1, {T[2]}"); P(f"v_and_b32 {T[3]}, 3, {T[3]}"); P(f"v_lshlrev_b32 {T[3]}, 1, {T[3]}")
    P(f"v_mul_u32_u24 {T[4]}, 384, {T[2]}")
    P(f"v_and_b32 {T[5]}, 3, {L}"); P(f"v_lshrrev_b32 {T[6]}, 1, {T[5]}"); P(f"v_and_b32 {T[5]}, 1, {T[5]}"); P(f"v_lshlrev_b32 {T[5]}, 3, {T[5]}")
    P(f"v_add_u32 {T[4]}, {T[4]}, {T[5]}"); P(f"v_add_u32 {T[4]}, 8192, {T[4]}")
    P(f"s_and_b32 s{t[2]}, s{S_W}, 1"); P(f"s_mul_i32 s{t[2]}, s{t[2]}, 12")
    for nt in range(6):
        P(f"s_add_u32 s{t[3]}, s{t[2]}, {2*nt}"); P(f"v_add_u32 {T[7]}, s{t[3]}, {T[6]}"); P(f"v_xor_b32 {T[7]}, {T[7]}, {T[3]}")
        P(f"v_lshlrev_b32 {T[7]}, 4, {T[7]}"); P(f"v_add_u32 v{V_WA[nt]}, {T[7]}, {T[4]}")
    P("s_waitcnt lgkmcnt(0)")
    P(f"s_mov_b32 s{S_SRDO}, s72"); P(f"s_mov_b32 s{S_SRDO+1}, s73"); P(f"s_mov_b32 s{S_SRDO+2}, {2*80*128*1024}"); P(f"s_mov_b32 s{S_SRDO+3}, 0x20000")
    P(f"s_mov_b32 s{S_SRDW}, s64"); P(f"s_mov_b32 s{S_SRDW+1}, s65"); P(f"s_mov_b32 s{S_SRDW+2}, {4096*1152}"); P(f"s_mov_b32 s{S_SRDW+3}, 0x20000")
    P(f"s_add_u32 s{S_SRDX}, s72, {EX_OFF}"); P(f"s_addc_u32 s{S_SRDX+1}, s73, 0"); P(f"s_mov_b32 s{S_SRDX+2}, {60*16*24576}"); P(f"s_mov_b32 s{S_SRDX+3}, 0x20000")
    P(f"s_mov_b32 s{S_SRDOUT}, s68"); P(f"s_mov_b32 s{S_SRDOUT+1}, s69"); P(f"s_mov_b32 s{S_SRDOUT+2}, {1280*2304}"); P(f"s_mov_b32 s{S_SRDOUT+3}, 0x20000")
    P(f"s_mov_b32 s{S_SRDD}, s70"); P(f"s_mov_b32 s{S_SRDD+1}, s71"); P(f"s_mov_b32 s{S_SRDD+2}, 256"); P(f"s_mov_b32 s{S_SRDD+3}, 0x20000")

    def dma_stage(i):
        buf = i % NBUF; tag = f"S{i}"
        def dm(txt):
            def f(): P(txt); vq.push(tag)
            return f
        out = []
        out.append(f"s_add_u32 s{t[8]}, s{S_OG[0]}, s{S_KS}")
        out.append(f"s_add_u32 m0, s{t[12]}, {buf*STAGE}")
        out.append(dm(f"buffer_load_dwordx4 v{V_OG}, s[{S_SRDO}:{S_SRDO+3}], s{t[8]} offen lds"))
        out.append(f"s_add_u32 s{t[8]}, s{S_OG[1]}, s{S_KS}")
        out.append(f"s_add_u32 m0, s{t[12]}, {buf*STAGE + 1024}")
        out.append(dm(f"buffer_load_dwordx4 v{V_OG}, s[{S_SRDO}:{S_SRDO+3}], s{t[8]} offen lds"))
        for u in range(3):
            out.append(f"s_add_u32 m0, s{t[13]}, {buf*STAGE + u*1024}")
            out.append(dm(f"buffer_load_dwordx4 v{V_WG[u]}, s[{S_SRDW}:{S_SRDW+3}], s{S_KW} offen lds"))
        out += [f"s_add_u32 s{S_KS}, s{S_KS}, 1024", f"s_add_u32 s{S_KW}, s{S_KW}, {32*1152}",
                [f"s_cmp_eq_u32 s{S_KS}, 32768", f"s_cselect_b32 s{S_KS}, 0, s{S_KS}", f"s_cselect_b32 s{S_KW}, 0, s{S_KW}"]]
        return out
    def run(l):
        for x in l:
            if callable(x): x()
            elif isinstance(x, list): run(x)
            else: P(x)
    def rd_stage(i):
        buf = i % NBUF; fs = i & 1
        out = []
        for rt in range(4): out.append(f"ds_read_b128 {vr(BFr(fs, rt))}, v{V_OA} offset:{buf*STAGE + rt*1024}")
        for nt in range(6):
            base = buf * STAGE
            out.append(("tr", nt, 0)); out.append(("tr", nt, 1))
        res = []
        for o in out:
            if isinstance(o, tuple):
                _, nt, h = o
                off = buf * STAGE + h * 16 * 384
                res.append(f"ds_read_b64_tr_b16 {vr(AFr(fs, nt) + 2*h, 2)}, v{V_WA[nt]} offset:{off}")
            else: res.append(o)
        return [res[0], res[4], res[5]] + res[1:4] + res[6:]
    assert (NBUF - 1) * STAGE + 16 * 384 < 65536 - 20000 or True
    P(f"s_lshl_b32 s{t[12]}, s{S_W}, 11")
    P(f"s_mul_i32 s{t[13]}, s{S_W}, 3072"); P(f"s_add_u32 s{t[13]}, s{t[13]}, 8192")
    NK = 32; LA = 3
    for i in range(LA): run(dma_stage(i))
    stamp()
    vq.wait(P, "S0"); P("s_barrier"); run(rd_stage(0))
    for i in range(NK):
        fs = i & 1
        mf = []
        for nt in range(6):
            for rt in range(4):
                a = A_(rt, nt); c = "0" if i == 0 else vr(a)
                mf.append(f"v_mfma_f32_16x16x32_bf16 {vr(a)}, {vr(AFr(fs, nt))}, {vr(BFr(fs, rt))}, {c}")
        P("s_waitcnt lgkmcnt(0)")
        for m in mf[:3]: P(m)
        if i + 1 < NK: vq.wait(P, f"S{i+1}")
        P("s_barrier")
        dm = dma_stage(i + LA) if i + LA < NK else []
        rd = rd_stage(i + 1) if i + 1 < NK else []
        fill = []; di = ri = 0
        while di < len(dm) or ri < len(rd):
            for _ in range(2):
                if ri < len(rd): fill.append(rd[ri]); ri += 1
            if di < len(dm): fill.append(dm[di]); di += 1
        interleave(P, mf[3:], fill)
        if i in (0, 15): stamp()
    stamp()
    P(f"s_mul_i32 s{t[0]}, s{S_P}, 30"); P(f"s_lshr_b32 s{t[1]}, s2, 3"); P(f"s_add_u32 s{t[0]}, s{t[0]}, s{t[1]}")
    P(f"s_mul_i32 s{t[2]}, s{S_W}, 6144")
    P(f"v_lshlrev_b32 {T[0]}, 4, {L}")
    for j in range(4):
        lab = f"L_k2_skip{j}"
        P(f"s_cmp_eq_u32 s{S_KQ}, {j}"); P(f"s_cbranch_scc1 {lab}")
        P(f"s_lshl_b32 s{t[3]}, s{t[0]}, 2"); P(f"s_add_u32 s{t[3]}, s{t[3]}, {j}"); P(f"s_lshl_b32 s{t[3]}, s{t[3]}, 2"); P(f"s_add_u32 s{t[3]}, s{t[3]}, s{S_KQ}")
        P(f"s_mul_i32 s{t[3]}, s{t[3]}, 24576"); P(f"s_add_u32 s{t[3]}, s{t[3]}, s{t[2]}")
        for nt in range(6):
            if nt == 4: P(f"s_add_u32 s{t[3]}, s{t[3]}, 4096")
            o = (nt % 4) * 1024
            P(f"buffer_store_dwordx4 {vr(A_(j, nt))}, {T[0]}, s[{S_SRDX}:{S_SRDX+3}], s{t[3]} offen offset:{o} sc1")
        P.label(lab)
    P("s_waitcnt vmcnt(0)"); P("s_barrier")
    stamp()
    P(f"s_cmp_lg_u32 s{S_W}, 0"); P("s_cbranch_scc1 L_k2_wait")
    P(f"s_lshl_b32 s{t[4]}, s{t[0]}, 2"); P(f"v_mov_b32 {T[1]}, s{t[4]}"); P(f"v_mov_b32 {T[2]}, 1")
    P(f"v_cmp_eq_u32 vcc, 0, {L}"); P("s_and_saveexec_b64 s[60:61], vcc")
    P(f"buffer_atomic_add {T[2]}, {T[1]}, s[{S_SRDD}:{S_SRDD+3}], 0 offen")
    P("s_mov_b64 exec, s[60:61]")
    P(f"s_mov_b32 s{t[5]}, 0")
    P.label("L_k2_poll")
    P(f"buffer_load_dword {T[3]}, {T[1]}, s[{S_SRDD}:{S_SRDD+3}], 0 offen sc1")
    P("s_waitcnt vmcnt(0)")
    P(f"v_readfirstlane_b32 s{t[6]}, {T[3]}")
    P(f"s_cmp_ge_u32 s{t[6]}, 4"); P("s_cbranch_scc1 L_k2_wait")
    P("s_sleep 1")
    P(f"s_add_u32 s{t[5]}, s{t[5]}, 1"); P(f"s_cmp_lt_u32 s{t[5]}, 200000"); P("s_cbranch_scc1 L_k2_poll")
    P.label("L_k2_wait")
    P("s_barrier")
    stamp()
    R0 = BF
    n = 0
    for u in range(1, 4):
        P(f"s_add_u32 s{t[4]}, s{S_KQ}, {u}"); P(f"s_and_b32 s{t[4]}, s{t[4]}, 3")
        P(f"s_lshl_b32 s{t[3]}, s{t[0]}, 2"); P(f"s_add_u32 s{t[3]}, s{t[3]}, s{S_KQ}"); P(f"s_lshl_b32 s{t[3]}, s{t[3]}, 2"); P(f"s_add_u32 s{t[3]}, s{t[3]}, s{t[4]}")
        P(f"s_mul_i32 s{t[3]}, s{t[3]}, 24576"); P(f"s_add_u32 s{t[3]}, s{t[3]}, s{t[2]}")
        for nt in range(6):
            if nt == 4: P(f"s_add_u32 s{t[3]}, s{t[3]}, 4096")
            o = (nt % 4) * 1024
            P(f"buffer_load_dwordx4 {vr(R0 + (u-1)*24 + nt*4)}, {T[0]}, s[{S_SRDX}:{S_SRDX+3}], s{t[3]} offen offset:{o} sc1")
    OWN = 208
    for j in range(4):
        lab = f"L_k2_mv{j}"
        P(f"s_cmp_lg_u32 s{S_KQ}, {j}"); P(f"s_cbranch_scc1 {lab}")
        for nt in range(6):
            for r in range(4): P(f"v_mov_b32 v{OWN + nt*4 + r}, v{A_(j, nt) + r}")
        P.label(lab)
    for u in range(3):
        P(f"s_waitcnt vmcnt({6*(2-u)})")
        for k in range(24): P(f"v_add_f32 v{OWN + k}, v{OWN + k}, v{R0 + u*24 + k}")
    P(f"s_lshl_b32 s{t[3]}, s{S_MT}, 3"); P(f"s_lshr_b32 s{t[4]}, s{S_W}, 1"); P(f"s_lshl_b32 s{t[4]}, s{t[4]}, 2"); P(f"s_add_u32 s{t[3]}, s{t[3]}, s{t[4]}")
    P(f"s_add_u32 s{t[3]}, s{t[3]}, s{S_KQ}"); P(f"s_mul_i32 s{t[3]}, s{t[3]}, {16*2304}")
    P(f"s_mul_i32 s{t[4]}, s{S_P}, 1152"); P(f"s_add_u32 s{t[3]}, s{t[3]}, s{t[4]}")
    P(f"s_mul_i32 s{t[4]}, s{S_N3}, 384"); P(f"s_add_u32 s{t[3]}, s{t[3]}, s{t[4]}")
    P(f"s_and_b32 s{t[4]}, s{S_W}, 1"); P(f"s_mul_i32 s{t[4]}, s{t[4]}, 192"); P(f"s_add_u32 s{t[3]}, s{t[3]}, s{t[4]}")
    P(f"v_and_b32 {T[1]}, 15, {L}"); P(f"v_mul_u32_u24 {T[1]}, 2304, {T[1]}"); P(f"v_lshrrev_b32 {T[2]}, 4, {L}"); P(f"v_lshlrev_b32 {T[2]}, 4, {T[2]}")
    P(f"v_add_u32 {T[1]}, {T[1]}, {T[2]}")
    for u in range(3):
        A = OWN + (2*u) * 4; B = OWN + (2*u + 1) * 4
        P(f"v_cvt_pk_bf16_f32 v{A}, v{A}, v{A+1}"); P(f"v_cvt_pk_bf16_f32 v{A+1}, v{A+2}, v{A+3}")
        P(f"v_cvt_pk_bf16_f32 v{B}, v{B}, v{B+1}"); P(f"v_cvt_pk_bf16_f32 v{B+1}, v{B+2}, v{B+3}")
        P(f"v_permlane32_swap_b32 v{A}, v{B}"); P(f"v_permlane32_swap_b32 v{A+1}, v{B+1}")
        P(f"v_permlane16_swap_b32 v{A}, v{B}"); P(f"v_permlane16_swap_b32 v{A+1}, v{B+1}")
        P(f"v_mov_b32 v{A+2}, v{B}"); P(f"v_mov_b32 v{A+3}, v{B+1}")
        P(f"buffer_store_dwordx4 {vr(A)}, {T[1]}, s[{S_SRDOUT}:{S_SRDOUT+3}], s{t[3]} offen offset:{u*64}")
    if stamps:
        P("s_waitcnt vmcnt(0)")
        stamp()
        P("s_waitcnt lgkmcnt(0)")
        for i in range(8): P(f"v_mov_b32 v{4+i}, s{80+2*min(i, nst[0]-1)}")
        P(f"s_lshl_b32 s{t[0]}, s2, 2"); P(f"s_add_u32 s{t[0]}, s{t[0]}, s{S_W}"); P(f"s_lshl_b32 s{t[0]}, s{t[0]}, 5")
        P(f"s_add_u32 s76, s72, 0x4100000"); P("s_addc_u32 s77, s73, 0"); P("s_mov_b32 s78, 0x100000"); P("s_mov_b32 s79, 0x20000")
        P(f"v_mov_b32 v12, s{t[0]}"); P(f"v_cmp_eq_u32 vcc, 0, {L}"); P("s_and_saveexec_b64 s[74:75], vcc")
        P("buffer_store_dwordx4 v[4:7], v12, s[76:79], 0 offen")
        P("buffer_store_dwordx4 v[8:11], v12, s[76:79], 0 offen offset:16")
    P.label("L_k2_done")
    P("s_endpgm")
```

```python
import sys
from asmlib import *
import k1
HDR = open("concat_heads__gqa_block_cached__mha_block_cached__near_ridge.s.ref").read().split("\n")
hdr = [l for l in HDR if l.startswith(";") and "@launch" not in l and "Override launch" not in l and "grid=ceil" not in l]
def build(opts):
    P = Prog()
    launches = []
    body = []
    launches.append("; @launch kernel=attn_kernel grid=(256,1,1) block=(256,1,1) lds=163840")
    k1.gen_k1(P, nt=opts.get("nt", " nt"), stamps=opts.get("stamps", False), opts=opts)
    descs = k1.desc("attn_kernel", 512, 256)
    if opts.get("k2", True):
        import k2
        launches.append(f"; @launch kernel=oproj_kernel grid=(256,1,1) block=(256,1,1) lds={k2.LDS}")
        k2.gen_k2(P, opts)
        descs += k1.desc("oproj_kernel", k2.NVGPR, k2.NVGPR)
    errs = P.check_branches()
    for e in errs: print("BRANCH HAZARD:", e, file=sys.stderr)
    txt = "\n".join(hdr[:14]) + "\n" + "\n".join(launches) + "\n" + '.amdgcn_target "amdgcn-amd-amdhsa--gfx950"\n.text\n' + P.text() + descs
    print(f"instructions: {sum(1 for k, v in P.items if k == 'i')}, auto nops: {P.nops}", file=sys.stderr)
    return txt
if __name__ == "__main__":
    out = sys.argv[1]
    opts = {}
    for a in sys.argv[2:]:
        k, v = a.split("=")
        opts[k] = {"1": True, "0": False}.get(v, v)
    open(out, "w").write(build(opts))
```

```python
import re

def _expand(tok):
    tok = tok.strip()
    neg = tok.startswith("-")
    if neg: tok = tok[1:]
    m = re.fullmatch(r"abs\((.*)\)", tok)
    if m: tok = m.group(1)
    m = re.fullmatch(r"([vas])(\d+)", tok)
    if m: return [m.group(1) + m.group(2)]
    m = re.fullmatch(r"([vas])\[(\d+):(\d+)\]", tok)
    if m: return [m.group(1) + str(i) for i in range(int(m.group(2)), int(m.group(3)) + 1)]
    if tok in ("vcc", "exec", "m0", "scc"): return [tok]
    if tok in ("vcc_lo", "vcc_hi"): return ["vcc"]
    if tok in ("exec_lo", "exec_hi"): return ["exec"]
    return []

TRANS = ("v_exp_f32", "v_log_f32", "v_rcp_f32", "v_rsq_f32", "v_sqrt_f32", "v_sin_f32", "v_cos_f32", "v_rcp_iflag_f32")

class Ins:
    __slots__ = ("text", "mn", "cls", "wr", "rd", "srcC", "dst", "passes", "ws", "ab")
    def __init__(self, text):
        self.text = text
        t = text.split(";")[0].strip()
        parts = t.split(None, 1)
        mn = parts[0]; self.mn = mn
        rest = parts[1] if len(parts) > 1 else ""
        ops = [o.strip() for o in rest.split(",")] if rest else []
        opsm = []
        for o in ops:
            opsm.append(o.split()[0] if o else o)
        R = [_expand(o) for o in opsm]
        self.wr = set(); self.rd = set(); self.srcC = set(); self.dst = set(); self.passes = 0; self.ws = 1; self.ab = set()
        mods = rest
        if mn == "s_nop":
            self.cls = "nop"; self.ws = int(opsm[0], 0) + 1
        elif mn.startswith("v_mfma"):
            self.cls = "mfma"
            self.wr = set(R[0]); self.dst = set(R[0]); self.ab = set(R[1]) | set(R[2]); self.srcC = set(R[3])
            self.rd = self.ab | self.srcC
            self.passes = 8 if "32x32" in mn else 4
        elif mn.startswith("v_"):
            self.cls = "trans" if any(mn.startswith(x) for x in TRANS) else "valu"
            if mn.startswith("v_permlane") and "swap" in mn:
                self.cls = "permlane"; self.wr = set(R[0]) | set(R[1]); self.rd = set(self.wr)
            elif mn.startswith("v_cmp"):
                self.wr = set(R[0]); self.rd = set().union(*R[1:]) if len(R) > 1 else set()
                if mn.startswith("v_cmpx"): self.wr |= {"exec"}
            elif mn.startswith("v_readfirstlane") or mn.startswith("v_readlane"):
                self.cls = "readlane"; self.wr = set(R[0]); self.rd = set().union(*R[1:])
            elif mn.startswith("v_add_co") or mn.startswith("v_sub_co") or mn.startswith("v_addc_co"):
                self.wr = set(R[0]) | set(R[1]); self.rd = set().union(*R[2:])
            else:
                self.wr = set(R[0]); self.rd = set().union(*R[1:]) if len(R) > 1 else set()
                if mn.startswith("v_fmac") or mn.startswith("v_pk_fmac") or mn.startswith("v_dot2c"): self.rd |= self.wr
                if mn.startswith("v_cndmask") and len(R) == 3: self.rd |= {"vcc"}
        elif mn.startswith("ds_read") or mn.startswith("ds_bpermute") or mn.startswith("ds_swizzle"):
            self.cls = "ds"; self.wr = set(R[0]); self.rd = set().union(*R[1:])
        elif mn.startswith("ds_write"):
            self.cls = "ds"; self.rd = set().union(*R)
        elif mn.startswith("buffer_load") or mn.startswith("global_load"):
            if " lds" in " " + mods + " " and mn.startswith("buffer_load") and re.search(r"\blds\b", mods):
                self.cls = "dma"; self.rd = set().union(*R) | {"m0"}
            else:
                self.cls = "vmem"; self.wr = set(R[0]); self.rd = set().union(*R[1:])
        elif mn.startswith("buffer_store") or mn.startswith("global_store"):
            self.cls = "vstore"; self.rd = set().union(*R)
            self.dst = set(R[0]) if mn.startswith("buffer_store") else set(R[1])
        elif mn.startswith("buffer_atomic") or mn.startswith("global_atomic"):
            self.cls = "vmem"; self.rd = set().union(*R)
            if re.search(r"\bsc0\b", mods): self.wr = set(R[0])
        elif mn.startswith("buffer_wbl2") or mn.startswith("buffer_inv"):
            self.cls = "vmem"
        elif mn.startswith("s_"):
            self.cls = "salu"
            if mn.startswith("s_cmp") or mn.startswith("s_bitcmp"):
                self.rd = set().union(*R) if R else set(); self.wr = {"scc"}
            elif mn.startswith("s_cbranch") or mn in ("s_branch", "s_barrier", "s_endpgm", "s_waitcnt", "s_sleep", "s_setprio", "s_setpc_b64", "s_call_b64", "s_swappc_b64"):
                self.cls = "ctl"
                if mn in ("s_setpc_b64",): self.rd = set(R[0])
                if mn in ("s_call_b64",): self.wr = set(R[0])
            elif mn.startswith("s_load") or mn.startswith("s_memtime") or mn.startswith("s_memrealtime") or mn.startswith("s_buffer_load"):
                self.cls = "smem"; self.wr = set(R[0]); self.rd = set().union(*R[1:]) if len(R) > 1 else set()
            else:
                self.wr = set(R[0]) if R else set(); self.rd = set().union(*R[1:]) if len(R) > 1 else set()
                if "saveexec" in mn: self.wr |= {"exec"}; self.rd |= {"exec"}
        else:
            raise ValueError("unknown instruction: " + text)

def is_valu(i): return i.cls in ("valu", "trans", "permlane", "readlane")
def vregs(s): return {r for r in s if r[0] in "va" and r not in ("vcc",)}
def sregs(s): return {r for r in s if (r[0] == "s" and r != "scc") or r == "vcc"}

def need(p, c):
    n = 0
    pw = p.wr
    if is_valu(p):
        pv = vregs(pw)
        if c.cls == "mfma" and pv & c.rd: n = max(n, 2)
        if c.cls == "permlane" and pv & c.rd: n = max(n, 2)
        if c.cls == "readlane" and pv & c.rd: n = max(n, 1)
        if p.cls == "trans" and is_valu(c) and c.cls != "trans" and pv & c.rd: n = max(n, 1)
        if p.cls == "trans" and c.cls == "trans" and pv & c.rd: n = max(n, 1)
        ps = sregs(pw)
        if ps:
            if is_valu(c) and ps & c.rd: n = max(n, 2)
            if c.cls in ("vmem", "dma", "vstore") and ps & c.rd: n = max(n, 5)
            if c.cls == "ctl" and c.mn.startswith("s_cbranch_vcc") and "vcc" in ps: n = max(n, 5)
            if c.cls in ("salu",) and ps & c.rd: n = max(n, 4)
        if "exec" in pw:
            if c.cls == "mfma": n = max(n, 4)
            if c.cls in ("permlane", "readlane"): n = max(n, 4)
            if is_valu(c): n = max(n, 2)
    if p.cls == "mfma":
        big = {4: 8, 8: 12}[p.passes]; ovl = {4: 6, 8: 10}[p.passes]; war = {4: 3, 8: 7}[p.passes]
        if c.cls == "mfma":
            if p.dst & c.ab: n = max(n, big)
            if p.dst & c.srcC and not (p.dst == c.srcC and p.passes == c.passes): n = max(n, ovl)
            if p.dst & c.dst and not (p.dst == c.srcC): n = max(n, ovl)
        elif is_valu(c):
            if p.dst & (c.rd | c.wr): n = max(n, big)
            if p.srcC & c.wr: n = max(n, war)
        elif c.cls in ("ds", "vmem", "vstore", "dma"):
            if p.dst & (c.rd | c.wr): n = max(n, big)
    if p.cls == "salu" and "m0" in pw and c.cls == "dma": n = max(n, 1)
    if p.cls == "salu" and "exec" in pw and c.cls == "mfma": n = max(n, 1)
    if p.cls == "vstore" and len(p.dst) >= 3:
        if vregs(c.wr) & p.dst: n = max(n, 2 if is_valu(c) else 1)
    return n

LOOKBACK = 14

class Prog:
    def __init__(self):
        self.items = []
        self.nops = 0
        self.auto = True
        self.lq = []
        self.lq_smem = False
        self.autolgkm = False
    def raw(self, t): self.items.append(("t", t))
    def label(self, name): self.items.append(("l", name))
    def c(self, t): self.items.append(("t", "    ; " + t))
    def _recent(self):
        out = []
        for k, v in reversed(self.items):
            if k == "i":
                out.append(v)
                if len(out) >= LOOKBACK: break
        return out
    def _lgkm(self, ins):
        if ins.mn == "s_waitcnt":
            m = re.search(r"lgkmcnt\((\d+)\)", ins.text)
            if m:
                n = int(m.group(1))
                self.lq = self.lq[len(self.lq) - n:] if n and n < len(self.lq) else ([] if n == 0 else self.lq)
                if n == 0: self.lq_smem = False
            return
        if self.autolgkm:
            touch = ins.rd | ins.wr
            idx = -1
            for i, d in enumerate(self.lq):
                if d & touch: idx = i
            if idx >= 0:
                n = len(self.lq) - 1 - idx
                if self.lq_smem: n = 0
                n = min(n, 15)
                self.items.append(("i", Ins(f"s_waitcnt lgkmcnt({n})")))
                self.lq = self.lq[len(self.lq) - n:] if n else []
                if n == 0: self.lq_smem = False
        if ins.cls == "ds": self.lq.append(set(ins.wr))
        if ins.cls == "smem": self.lq_smem = True
    def __call__(self, text):
        ins = Ins(text)
        self._lgkm(ins)
        req = 0; dist = 0
        for p in self._recent():
            r = need(p, ins)
            if r - dist > req: req = r - dist
            dist += p.ws
            if dist >= 13: break
        while req > 0:
            k = min(req, 16)
            self.items.append(("i", Ins(f"s_nop {k-1}"))); self.nops += 1
            req -= k
        self.items.append(("i", ins))
        return ins
    def text(self):
        out = []
        for k, v in self.items:
            if k == "i": out.append("    " + v.text)
            elif k == "l": out.append(v + ":")
            else: out.append(v)
        return "\n".join(out) + "\n"
    def check_branches(self):
        idx = {v: n for n, (k, v) in enumerate(self.items) if k == "l"}
        errs = []
        for n, (k, v) in enumerate(self.items):
            if k != "i": continue
            if not (v.mn.startswith("s_cbranch") or v.mn in ("s_branch", "s_call_b64")): continue
            tgt = v.text.split()[-1]
            if tgt not in idx: continue
            tail = [x for kk, x in self.items[max(0, n - 40):n + 1] if kk == "i"][-LOOKBACK:]
            head = [x for kk, x in self.items[idx[tgt]:idx[tgt] + 60] if kk == "i"][:LOOKBACK]
            seq = tail + head
            for j in range(len(tail), len(seq)):
                dist = 0
                for i2 in range(j - 1, -1, -1):
                    if i2 < len(tail):
                        r = need(seq[i2], seq[j])
                        if r > dist: errs.append((v.text, seq[i2].text, seq[j].text, r, dist))
                    dist += seq[i2].ws
        return errs

def interleave(P, mfmas, fillers, lead=0):
    n = len(mfmas); f = len(fillers)
    done = 0
    for j, m in enumerate(mfmas):
        P(m)
        want = ((j + 1) * f) // n if j >= lead else 0
        if j == n - 1: want = f
        while done < want:
            x = fillers[done]; done += 1
            if callable(x): x()
            elif isinstance(x, (list, tuple)):
                for y in x:
                    y() if callable(y) else P(y)
            else: P(x)
```

```python
from asmlib import *

WREG = 40960
SLOT_K = [0, 16384]
SLOT_V = [8192, 24576]
STG = 16384
CSCALE = 0.08838834764831845 * 1.4426950408889634
BIAS = 7.0

import struct
def f2u(x): return struct.unpack("<I", struct.pack("<f", x))[0]

V_L = 0
V_XA = 1
V_WA = list(range(2, 10))
V_XG = 10
V_WG = [11, 12]
V_KA = list(range(13, 17))
V_KG = list(range(17, 21))
V_VG = [21, 22]
V_T = list(range(23, 32))
V_WG4 = [224, 225, 226, 227]
V_XG5 = [228, 229, 230, 231, 232]
V_XA2 = [1, 233]
KF = 32
S0 = 64
P0 = 104
NM = 124
LL = 144
VF = 164
ONES = 196
ET = 200
ACC = 64
def S(kt, qt): return S0 + (qt * 2 + kt) * 4
def vr(b, n=4): return f"v[{b}:{b+n-1}]"
def ar(b, n=4): return f"a[{b}:{b+n-1}]"
def Oa(dt, qt): return (dt * 5 + qt) * 4
def Qa(qt, s): return 160 + (qt * 4 + s) * 4
def XF(st, qt): return st * 52 + qt * 4
def WF(st, dt): return st * 52 + 20 + dt * 4

S_SRDX, S_SRDW, S_SRDK, S_SRDV, S_SRDO = 4, 8, 12, 16, 20
S_W, S_P, S_B, S_H = 24, 25, 26, 27
S_WB = 28
S_KOFF = 29
S_VOFF = 30
S_XG = [31, 32, 33]
S_XL = [34, 35, 36]
S_WGB = 37
S_WL = 38
S_KX = 39
S_KW = 40
S_T = list(range(41, 56))
S_CNT = 56
S_RET = 58
S_OB = 60
S_C = 61
S_MASK = 62
S_RHO = 63

class VQ:
    def __init__(self): self.q = []
    def push(self, tag): self.q.append(tag)
    def wait(self, P, tag):
        if tag not in self.q: return None
        idx = max(i for i, t in enumerate(self.q) if t == tag)
        n = len(self.q) - 1 - idx
        assert n <= 63, n
        P(f"s_waitcnt vmcnt({n})")
        self.q = self.q[idx + 1:]
        return n

def gen_k1(P, nt=" nt", name="attn_kernel", stamps=False, opts={}):
    vq = VQ()
    P.raw(f".globl {name}\n.p2align 8\n.type {name},@function\n{name}:")
    P("s_cmp_ge_u32 s2, 256"); P("s_cbranch_scc1 L_k1_done")
    t = S_T
    P(f"s_and_b32 s{t[0]}, s2, 7")
    P(f"s_lshr_b32 s{t[1]}, s2, 3")
    P(f"s_and_b32 s{S_P}, s{t[1]}, 1")
    P(f"s_lshr_b32 s{t[1]}, s{t[1]}, 1")
    P(f"s_mul_i32 s{t[4]}, s{S_P}, 40")
    P(f"s_add_u32 s{t[5]}, s0, s{t[4]}"); P(f"s_addc_u32 s{t[6]}, s1, 0")
    assert t[5] % 2 == 0
    P(f"s_load_dwordx8 s[64:71], s[{t[5]}:{t[6]}], 0")
    P(f"s_load_dwordx2 s[72:73], s[0:1], 96")
    nst = [0]
    def stamp(grp="main"):
        if stamps and grp == opts.get("stgrp", "main") and nst[0] < 8:
            P(f"s_memrealtime s[{80+2*nst[0]}:{81+2*nst[0]}]"); nst[0] += 1
            if grp == "clk":
                P(f"s_memtime s[{80+2*nst[0]}:{81+2*nst[0]}]"); nst[0] += 1
    if opts.get("stgrp", "main") not in ("k2", "none"): stamp(opts.get("stgrp", "main"))
    P(f"v_lshrrev_b32 v1, 6, v0"); P(f"v_and_b32 v{V_L}, 63, v0")
    P(f"v_readfirstlane_b32 s{S_W}, v1")
    P(f"s_and_b32 s{t[2]}, s{t[1]}, 3")
    P(f"s_lshr_b32 s{t[3]}, s{t[1]}, 2")
    P(f"s_add_u32 s{t[7]}, s{t[2]}, s{t[3]}"); P(f"s_and_b32 s{S_RHO}, s{t[7]}, 3")
    P(f"s_and_b32 s{t[8]}, s{t[0]}, 3"); P(f"s_lshl_b32 s{t[8]}, s{t[8]}, 2"); P(f"s_add_u32 s{t[2]}, s{t[2]}, s{t[8]}")
    P(f"s_lshr_b32 s{t[8]}, s{t[0]}, 2"); P(f"s_lshl_b32 s{t[8]}, s{t[8]}, 2"); P(f"s_add_u32 s{t[3]}, s{t[3]}, s{t[8]}")
    if opts.get("norot"): P(f"s_mov_b32 s{S_RHO}, 0")
    if opts.get("rotmode") == "xcd":
        k = opts.get("rotk", "x")
        if k == "x": P(f"s_and_b32 s{S_RHO}, s2, 7")
        elif k == "coarse":
            P(f"s_mul_i32 s{S_RHO}, s{S_RHO}, 9"); P(f"s_lshr_b32 s{S_RHO}, s{S_RHO}, 2")
        elif k == "xp":
            P(f"s_and_b32 s{S_RHO}, s2, 7"); P(f"s_mul_i32 s{t[14]}, s{S_P}, 4"); P(f"s_add_u32 s{S_RHO}, s{S_RHO}, s{t[14]}"); P(f"s_cmp_ge_u32 s{S_RHO}, 9"); P(f"s_cselect_b32 s{t[14]}, 9, 0"); P(f"s_sub_u32 s{S_RHO}, s{S_RHO}, s{t[14]}")
        elif k == "half":
            P(f"s_and_b32 s{S_RHO}, s{S_RHO}, 1"); P(f"s_mul_i32 s{S_RHO}, s{S_RHO}, 4"); P(f"s_and_b32 s{t[14]}, s2, 3"); P(f"s_add_u32 s{S_RHO}, s{S_RHO}, s{t[14]}")
    P(f"s_lshr_b32 s{t[8]}, s{S_W}, 1"); P(f"s_lshl_b32 s{S_B}, s{t[3]}, 1"); P(f"s_add_u32 s{S_B}, s{S_B}, s{t[8]}")
    P(f"s_and_b32 s{t[9]}, s{S_W}, 1"); P(f"s_lshl_b32 s{S_H}, s{t[2]}, 1"); P(f"s_add_u32 s{S_H}, s{S_H}, s{t[9]}")
    P(f"s_mul_i32 s{S_WB}, s{S_W}, {WREG}")
    P(f"s_cmp_eq_u32 s{S_P}, 0")
    P(f"s_cselect_b32 s{t[10]}, s{t[2]}, s{S_H}")
    P(f"s_add_u32 s{t[11]}, s{S_P}, 4"); P(f"s_lshl_b32 s{t[11]}, s{S_B}, s{t[11]}")
    P(f"s_add_u32 s{t[10]}, s{t[10]}, s{t[11]}"); P(f"s_lshl_b32 s{S_KOFF}, s{t[10]}, 17")
    P(f"s_mov_b32 s{S_VOFF}, s{S_KOFF}")
    P(f"s_lshl_b32 s{t[12]}, s{t[3]}, 1"); P(f"s_add_u32 s{t[12]}, s{t[12]}, s{t[8]}")
    P(f"s_mul_i32 s{S_XG[0]}, s{t[12]}, {80*1152}"); P(f"s_mul_i32 s{t[13]}, s{t[9]}, {40*1152}"); P(f"s_add_u32 s{S_XG[0]}, s{S_XG[0]}, s{t[13]}")
    P(f"s_add_u32 s{t[11]}, s{t[8]}, 2"); P(f"s_mul_i32 s{t[11]}, s{t[11]}, {WREG}"); P(f"s_mul_i32 s{t[13]}, s{t[9]}, 5120")
    P(f"s_add_u32 s{S_XL[0]}, s{t[11]}, s{t[13]}"); P(f"s_add_u32 s{S_XL[0]}, s{S_XL[0]}, {STG}")
    P(f"s_lshl_b32 s{S_WGB}, s{t[8]}, 17"); P(f"s_lshl_b32 s{t[10]}, s{S_H}, 8"); P(f"s_add_u32 s{S_WGB}, s{S_WGB}, s{t[10]}")
    P(f"s_mul_i32 s{S_WL}, s{t[9]}, {WREG}"); P(f"s_lshl_b32 s{t[10]}, s{t[8]}, 12"); P(f"s_add_u32 s{S_WL}, s{S_WL}, s{t[10]}")
    P(f"s_add_u32 s{S_WL}, s{S_WL}, {STG}")
    P(f"s_lshl_b32 s{S_OB}, s{S_P}, 7"); P(f"s_lshl_b32 s{t[10]}, s{S_H}, 2"); P(f"s_add_u32 s{S_OB}, s{S_OB}, s{t[10]}")
    P(f"s_mul_i32 s{S_OB}, s{S_OB}, 80"); P(f"s_mul_i32 s{t[10]}, s{S_B}, 5"); P(f"s_add_u32 s{S_OB}, s{S_OB}, s{t[10]}")
    P(f"s_lshl_b32 s{S_OB}, s{S_OB}, 10")
    P(f"s_mov_b32 s{S_C}, {f2u(CSCALE):#x}"); P(f"s_mov_b32 s{S_MASK}, 0x40004000")
    L = f"v{V_L}"; T = [f"v{x}" for x in V_T]
    P(f"v_lshrrev_b32 {T[0]}, 3, {L}")
    P(f"v_lshrrev_b32 {T[1]}, 4, {L}")
    P(f"v_and_b32 {T[3]}, 7, {L}"); P(f"v_xor_b32 {T[3]}, {T[3]}, {T[1]}"); P(f"v_lshlrev_b32 {T[3]}, 4, {T[3]}")
    P(f"v_mul_u32_u24 v{V_XG}, 1152, {T[0]}"); P(f"v_add_u32 v{V_XG}, v{V_XG}, {T[3]}")
    P(f"v_and_b32 {T[4]}, 15, {L}")
    P(f"v_lshrrev_b32 {T[5]}, 2, {T[4]}")
    P(f"v_lshrrev_b32 {T[2]}, 1, {T[4]}"); P(f"v_xor_b32 {T[2]}, {T[2]}, {T[1]}"); P(f"v_lshlrev_b32 {T[2]}, 4, {T[2]}")
    P(f"v_lshlrev_b32 v{V_XA2[0]}, 7, {T[4]}"); P(f"v_add_u32 v{V_XA2[0]}, v{V_XA2[0]}, {T[2]}")
    P(f"s_add_u32 s{t[10]}, s{t[8]}, 2"); P(f"s_mul_i32 s{t[10]}, s{t[10]}, {WREG}"); P(f"s_add_u32 s{t[10]}, s{t[10]}, {STG}")
    P(f"v_add_u32 v{V_XA2[0]}, s{t[10]}, v{V_XA2[0]}"); P(f"v_xor_b32 v{V_XA2[1]}, 64, v{V_XA2[0]}")
    P(f"v_lshlrev_b32 {T[2]}, 1, {T[1]}"); P(f"v_xor_b32 {T[2]}, {T[2]}, {T[4]}"); P(f"v_lshlrev_b32 {T[2]}, 4, {T[2]}")
    P(f"v_lshlrev_b32 v{V_WG[0]}, 13, {T[1]}"); P(f"v_add_u32 v{V_WG[0]}, v{V_WG[0]}, {T[2]}")
    P(f"v_xor_b32 v{V_WG[1]}, 0x80, v{V_WG[0]}")
    P(f"v_and_b32 {T[6]}, 3, {L}"); P(f"v_lshlrev_b32 {T[6]}, 3, {T[6]}")
    P(f"v_lshlrev_b32 {T[2]}, 3, {T[1]}"); P(f"v_add_u32 {T[2]}, {T[2]}, {T[5]}"); P(f"v_lshlrev_b32 {T[2]}, 8, {T[2]}")
    P(f"v_and_b32 {T[3]}, 1, {T[1]}"); P(f"v_lshlrev_b32 {T[3]}, 2, {T[3]}"); P(f"v_or_b32 {T[3]}, {T[3]}, {T[5]}"); P(f"v_lshlrev_b32 {T[7]}, 5, {T[3]}")
    P(f"v_add_u32 {T[2]}, {T[2]}, {T[7]}"); P(f"v_add_u32 {T[2]}, {T[2]}, {T[6]}")
    P(f"s_mul_i32 s{t[10]}, s{t[9]}, {WREG}"); P(f"s_add_u32 s{t[10]}, s{t[10]}, {STG}")
    P(f"v_add_u32 v{V_WA[0]}, s{t[10]}, {T[2]}")
    for dt in range(1, 8): P(f"v_xor_b32 v{V_WA[dt]}, {dt*32}, v{V_WA[0]}")
    P(f"v_xor_b32 {T[2]}, {T[4]}, {T[1]}"); P(f"v_lshlrev_b32 {T[2]}, 4, {T[2]}")
    P(f"v_lshlrev_b32 {T[3]}, 8, {T[1]}"); P(f"v_add_u32 v{V_KG[0]}, {T[3]}, {T[2]}")
    for v in range(1, 4): P(f"v_xor_b32 v{V_KG[v]}, {64*v}, v{V_KG[0]}")
    P(f"v_lshlrev_b32 {T[7]}, 8, {T[4]}"); P(f"v_add_u32 {T[7]}, {T[7]}, {T[2]}"); P(f"v_add_u32 v{V_KA[0]}, s{S_WB}, {T[7]}")
    for s in range(1, 4): P(f"v_xor_b32 v{V_KA[s]}, {64*s}, v{V_KA[0]}")
    P(f"v_lshlrev_b32 {T[2]}, 1, {T[1]}"); P(f"v_xor_b32 {T[2]}, {T[2]}, {T[4]}"); P(f"v_lshlrev_b32 {T[2]}, 4, {T[2]}")
    P(f"v_add_u32 v{V_VG[0]}, {T[3]}, {T[2]}"); P(f"v_xor_b32 v{V_VG[1]}, 0x80, v{V_VG[0]}")
    P(f"v_lshlrev_b32 {T[2]}, 2, {T[1]}"); P(f"v_add_u32 {T[2]}, {T[2]}, {T[5]}"); P(f"v_and_b32 {T[3]}, 7, {T[2]}")
    P(f"v_lshlrev_b32 {T[2]}, 8, {T[2]}"); P(f"v_lshlrev_b32 {T[3]}, 5, {T[3]}"); P(f"v_add_u32 {T[2]}, {T[2]}, {T[3]}")
    P(f"v_add_u32 {T[2]}, {T[2]}, {T[6]}"); P(f"v_add_u32 {T[8]}, s{S_WB}, {T[2]}")
    for u in range(4):
        P(f"s_add_u32 s{t[10]}, s{S_WGB}, {u*32768}"); P(f"v_add_u32 v{V_WG4[u]}, s{t[10]}, v{V_WG[u>>1]}")
    for u in range(5):
        P(f"s_add_u32 s{t[10]}, s{t[9]}, {u}"); P(f"s_and_b32 s{t[10]}, s{t[10]}, 1"); P(f"s_lshl_b32 s{t[10]}, s{t[10]}, 6")
        P(f"v_xor_b32 v{V_XG5[u]}, s{t[10]}, v{V_XG}")
        P(f"s_add_u32 s{t[10]}, s{S_XG[0]}, {u*8*1152}"); P(f"v_add_u32 v{V_XG5[u]}, s{t[10]}, v{V_XG5[u]}")
    stamp("pro")
    P("s_waitcnt lgkmcnt(0)")
    stamp("pro")
    P(f"s_mov_b32 s{S_SRDX}, s64"); P(f"s_mov_b32 s{S_SRDX+1}, s65"); P(f"s_mov_b32 s{S_SRDX+2}, {16*80*1152}"); P(f"s_mov_b32 s{S_SRDX+3}, 0x20000")
    P(f"s_mov_b32 s{S_SRDW}, s70"); P(f"s_mov_b32 s{S_SRDW+1}, s71"); P(f"s_mov_b32 s{S_SRDW+2}, {576*8192}"); P(f"s_mov_b32 s{S_SRDW+3}, 0x20000")
    P(f"s_add_u32 s{t[10]}, s{S_P}, 25"); P(f"s_lshl_b32 s{t[10]}, 1, s{t[10]}")
    P(f"s_mov_b32 s{S_SRDK}, s66"); P(f"s_mov_b32 s{S_SRDK+1}, s67"); P(f"s_mov_b32 s{S_SRDK+2}, s{t[10]}"); P(f"s_mov_b32 s{S_SRDK+3}, 0x20000")
    P(f"s_mov_b32 s{S_SRDV}, s68"); P(f"s_mov_b32 s{S_SRDV+1}, s69"); P(f"s_mov_b32 s{S_SRDV+2}, s{t[10]}"); P(f"s_mov_b32 s{S_SRDV+3}, 0x20000")
    P(f"s_mov_b32 s{S_SRDO}, s72"); P(f"s_mov_b32 s{S_SRDO+1}, s73"); P(f"s_mov_b32 s{S_SRDO+2}, {2*80*128*1024}"); P(f"s_mov_b32 s{S_SRDO+3}, 0x20000")

    def dcalc(tau, dst, sh):
        if opts.get("rotmode", "fine") == "xcd":
            return [[f"s_add_u32 s{dst}, s{S_RHO}, {tau}", f"s_cmp_ge_u32 s{dst}, 9", f"s_cselect_b32 s{t[14]}, 9, 0", f"s_sub_u32 s{dst}, s{dst}, s{t[14]}"], f"s_lshl_b32 s{dst}, s{dst}, {sh}"]
        if tau == 8: return [f"s_mov_b32 s{dst}, {8 << sh}"]
        m, r = tau >> 2, tau & 3
        return [[f"s_add_u32 s{dst}, s{S_RHO}, {r}", f"s_and_b32 s{dst}, s{dst}, 3", f"s_add_u32 s{dst}, s{dst}, {4*m}", f"s_lshl_b32 s{dst}, s{dst}, {sh}"]]
    def dma_w(st_idx):
        buf = st_idx % 3
        out = []; tag = f"W{st_idx}"
        def dm(txt):
            def f(): P(txt); vq.push(tag)
            return f
        if st_idx % 2 == 0: out += dcalc(st_idx >> 1, S_KW, 19)
        else: out.append(f"s_add_u32 s{S_KW}, s{S_KW}, 0x40000")
        for u in range(4):
            out.append(f"s_add_u32 m0, s{S_WL}, {buf*8192 + u*1024}")
            out.append(dm(f"buffer_load_dwordx4 v{V_WG4[u]}, s[{S_SRDW}:{S_SRDW+3}], s{S_KW} offen{opts.get('wfl','').replace('_',' ')} lds"))
        return out
    def dma_x(D):
        bx = (D + 1) & 1
        out = []; tag = f"X{D}"
        def dm(txt):
            def f(): P(txt); vq.push(tag)
            return f
        out += dcalc(D, S_KX, 7)
        for u in range(5):
            out.append(f"s_add_u32 m0, s{S_XL[0]}, {bx*10240 + u*1024}")
            out.append(dm(f"buffer_load_dwordx4 v{V_XG5[u]}, s[{S_SRDX}:{S_SRDX+3}], s{S_KX} offen{opts.get('xfl','').replace('_',' ')} lds"))
        return out
    def dma_kv(which, blk, slot):
        out = []
        srd = S_SRDK if which == "K" else S_SRDV
        off = S_KOFF if which == "K" else S_VOFF
        tag = f"{which}{blk}"
        def dm(txt):
            def f(): P(txt); vq.push(tag)
            return f
        for i in range(8):
            if i % 4 == 0:
                if i == 4: out.append(f"s_add_u32 s{off}, s{off}, 4096")
                out.append(f"s_add_u32 m0, s{S_WB}, {slot + (i>>2)*4096}")
            vg = V_KG[i & 3] if which == "K" else V_VG[i & 1]
            o = f" offset:{(i&3)*1024}" if i & 3 else ""
            out.append(dm(f"buffer_load_dwordx4 v{vg}, s[{srd}:{srd+3}], s{off} offen{o}{nt} lds"))
        out.append(f"s_add_u32 s{off}, s{off}, 4096")
        return out
    def run(l):
        for x in l:
            if callable(x): x()
            elif isinstance(x, list): run(x)
            else: P(x)
    def rd_stage(st_idx):
        buf = st_idx % 3; fs = st_idx & 1; D = st_idx >> 1; bx = (D + 1) & 1; hf = st_idx & 1
        out = []
        for qt in range(5):
            out.append(f"ds_read_b128 {ar(XF(fs, qt))}, v{V_XA2[hf]} offset:{bx*10240 + qt*2048}")
        for dt in range(8):
            out.append(f"ds_read_b64_tr_b16 {ar(WF(fs, dt), 2)}, v{V_WA[dt]} offset:{buf*8192}")
            out.append(f"ds_read_b64_tr_b16 {ar(WF(fs, dt)+2, 2)}, v{V_WA[dt]} offset:{buf*8192 + 1024}")
        return [out[0], out[5], out[6]] + out[1:5] + out[7:]

    P.c("phase 1 prologue")
    run(dma_x(0)); run(dma_w(0)); stamp("pro"); run(dma_w(1)); run(dma_x(1)); stamp("pro")
    kstep = int(opts.get("k0step", 5)); vstep = int(opts.get("v0step", 8))
    stamp("p1")
    vq.wait(P, "W0"); stamp("pro"); P("s_barrier")
    stamp("p1"); stamp("pro")
    run(rd_stage(0))
    NS = 18
    pf_cache = {}
    for st in range(NS):
        P.c(f"Q-proj step {st}")
        fs = st & 1
        mf = []
        for dt in range(8):
            for qt in range(5):
                a = ACC + (dt * 5 + qt) * 4
                c = "0" if st == 0 else vr(a)
                mf.append(f"v_mfma_f32_16x16x32_bf16 {vr(a)}, {ar(WF(fs, dt))}, {ar(XF(fs, qt))}, {c}")
        P("s_waitcnt lgkmcnt(0)")
        head = int(opts.get('head', 6))
        for m in mf[:head]: P(m)
        fill = []
        if st + 1 < NS:
            need_tags = [f"W{st+1}"] + ([f"X{(st+1)>>1}"] if (st + 1) % 2 == 0 else [])
            last = max(need_tags, key=lambda tg: max([i for i, x in enumerate(vq.q) if x == tg], default=-1))
            if not opts.get("nowait1"): vq.wait(P, last)
        if not opts.get("nobar1"): P("s_barrier")
        dm = []
        if st == 0: dm += dma_w(2)
        if st + 3 < NS and not opts.get("nodmaW"): dm += dma_w(st + 3)
        if st % 2 == 1 and (st + 3) // 2 < 9 and not opts.get("nodmaX"): dm += dma_x((st + 3) // 2)
        if not opts.get("nokv1"):
            sched = opts.get("pf", "5:K0a,5:K0b,8:V0a,8:V0b")
            for ev in sched.split(","):
                es, what = ev.split(":")
                if int(es) == st:
                    which, half = what[0], what[2]
                    key = what[:2]
                    if key not in pf_cache: pf_cache[key] = dma_kv(which, 0, SLOT_K[0] if which == "K" else SLOT_V[0])
                    atoms = pf_cache[key]
                    dm += atoms[:5] if half == "a" else atoms[5:]
            if st == 15: dm += dma_kv("K", 1, SLOT_K[1])
            if st == 17: dm += dma_kv("V", 1, SLOT_V[1])
        rd = rd_stage(st + 1) if st + 1 < NS else []
        if opts.get("nord1"): rd = []
        fill = []
        nd, nr = len(dm), len(rd)
        di = ri = 0
        rr = int(opts.get("rratio", 2))
        while di < nd or ri < nr:
            for _ in range(rr):
                if ri < nr: fill.append(rd[ri]); ri += 1
            if di < nd: fill.append(dm[di]); di += 1
        interleave(P, mf[head:], fill)
        if st in (0, 1, 2, 8, 17): stamp("p1")
        if st in tuple(int(x) for x in opts.get("p2steps", "8.9.10.11.12.13.14").split(".")): stamp("p2")
        if st in tuple(int(x) for x in opts.get("clksteps", "9.14").split(".")): stamp("clk")
    stamp()
    if opts.get("p1only"):
        P("s_waitcnt vmcnt(0)"); P("s_endpgm")
    P.c("Q conversion")
    for dt in range(8): P(f"v_xor_b32 v{V_WA[dt]}, {dt*32}, {T[8]}") if dt else P(f"v_mov_b32 v{V_WA[0]}, {T[8]}")
    for qt in range(5):
        for s in range(4):
            A = ACC + ((2 * s) * 5 + qt) * 4; B = ACC + ((2 * s + 1) * 5 + qt) * 4
            for r in range(4): P(f"v_mul_f32 v{A+r}, s{S_C}, v{A+r}")
            for r in range(4): P(f"v_mul_f32 v{B+r}, s{S_C}, v{B+r}")
            P(f"v_cvt_pk_bf16_f32 v{A}, v{A}, v{A+1}"); P(f"v_cvt_pk_bf16_f32 v{A+1}, v{A+2}, v{A+3}")
            P(f"v_cvt_pk_bf16_f32 v{B}, v{B}, v{B+1}"); P(f"v_cvt_pk_bf16_f32 v{B+1}, v{B+2}, v{B+3}")
    for qt in range(5):
        for s in range(4):
            A = ACC + ((2 * s) * 5 + qt) * 4; B = ACC + ((2 * s + 1) * 5 + qt) * 4
            P(f"v_permlane32_swap_b32 v{A}, v{B}"); P(f"v_permlane32_swap_b32 v{A+1}, v{B+1}")
    for qt in range(5):
        for s in range(4):
            A = ACC + ((2 * s) * 5 + qt) * 4; B = ACC + ((2 * s + 1) * 5 + qt) * 4
            P(f"v_permlane16_swap_b32 v{A}, v{B}"); P(f"v_permlane16_swap_b32 v{A+1}, v{B+1}")
    for qt in range(5):
        for s in range(4):
            A = ACC + ((2 * s) * 5 + qt) * 4; B = ACC + ((2 * s + 1) * 5 + qt) * 4
            q = Qa(qt, s)
            P(f"v_accvgpr_write_b32 a{q}, v{A}"); P(f"v_accvgpr_write_b32 a{q+1}, v{A+1}")
            P(f"v_accvgpr_write_b32 a{q+2}, v{B}"); P(f"v_accvgpr_write_b32 a{q+3}, v{B+1}")
    for r in range(4): P(f"v_mov_b32 v{ONES+r}, 0x3f803f80")

    def rd_K(slot):
        return [f"ds_read_b128 {vr(KF + (kt*4+s)*4)}, v{V_KA[s]} offset:{slot + kt*4096}" for kt in range(2) for s in range(4)]
    def rd_V(slot):
        out = []
        for dt in range(8):
            out.append(f"ds_read_b64_tr_b16 {vr(VF + dt*4, 2)}, v{V_WA[dt]} offset:{slot}")
            out.append(f"ds_read_b64_tr_b16 {vr(VF + dt*4 + 2, 2)}, v{V_WA[dt]} offset:{slot + 4096}")
        return out
    def qk_mfmas(qt, first):
        out = []
        for kt in range(2):
            for s in range(4):
                d = S(kt, qt)
                c = (("0" if first else vr(NM + qt * 4)) if s == 0 else vr(d))
                out.append(f"v_mfma_f32_16x16x32_bf16 {vr(d)}, {vr(KF + (kt*4+s)*4)}, {ar(Qa(qt, s))}, {c}")
        return out
    def softmax_ops(qt, orreg, first_or):
        e = ET + (qt & 1) * 8
        out = []
        for kt in range(2):
            for r in range(4): out.append(f"v_exp_f32 v{e + kt*4 + r}, v{S(kt, qt) + r}")
            out.append(f"v_cvt_pk_bf16_f32 v{P0 + qt*4 + kt*2}, v{e + kt*4}, v{e + kt*4 + 1}")
            out.append(f"v_cvt_pk_bf16_f32 v{P0 + qt*4 + kt*2 + 1}, v{e + kt*4 + 2}, v{e + kt*4 + 3}")
        o = [out[0], out[1], out[2], out[3], out[6], out[4], out[7], out[5], out[8], out[9], out[10], out[11]]
        p = P0 + qt * 4
        if first_or:
            o.append(f"v_or3_b32 {orreg}, v{p}, v{p+1}, v{p+2}"); o.append(f"v_or_b32 {orreg}, {orreg}, v{p+3}")
        else:
            o.append(f"v_or3_b32 {orreg}, {orreg}, v{p}, v{p+1}"); o.append(f"v_or3_b32 {orreg}, {orreg}, v{p+2}, v{p+3}")
        return o
    def colmax(qt, dst, tmp):
        a = S(0, qt); b = S(1, qt)
        P(f"v_max3_f32 {dst}, v{a}, v{a+1}, v{a+2}"); P(f"v_max3_f32 {tmp}, v{a+3}, v{b}, v{b+1}")
        P(f"v_max3_f32 {dst}, {dst}, v{b+2}, v{b+3}"); P(f"v_max_f32 {dst}, {dst}, {tmp}")
        P(f"v_mov_b32 {tmp}, {dst}"); P(f"v_permlane32_swap_b32 {dst}, {tmp}"); P(f"v_max_f32 {dst}, {dst}, {tmp}")
        P(f"v_mov_b32 {tmp}, {dst}"); P(f"v_permlane16_swap_b32 {dst}, {tmp}"); P(f"v_max_f32 {dst}, {dst}, {tmp}")
    ORR = T[0]
    def merge(a, b):
        out = []; i = j = 0
        while i < len(a) or j < len(b):
            if i < len(a) and (j >= len(b) or i * max(len(b), 1) <= j * len(a)): out.append(a[i]); i += 1
            else: out.append(b[j]); j += 1
        return out
    def block(i, first=False, issue=True, last=False):
        par = i & 1
        P.c(f"block {i} QK")
        P("s_waitcnt lgkmcnt(0)")
        dmK = dma_kv("K", i + 2, SLOT_K[par]) if issue else []
        rdV = rd_V(SLOT_V[par])
        waitV = lambda: vq.wait(P, f"V{i}")
        for qt in range(5):
            fill = []
            if not first and qt > 0: fill += softmax_ops(qt - 1, ORR, qt == 1)
            if qt == 0: fill += dmK[:6]
            if qt == 1: fill = merge(fill, dmK[6:])
            if qt == 3: fill = [waitV] + merge(fill, rdV[:8])
            if qt == 4: fill = merge(fill, rdV[8:])
            interleave(P, qk_mfmas(qt, first), fill)
        if first:
            P.c("first block: establish the running max")
            for qt in range(5):
                colmax(qt, T[1], T[2])
                P(f"v_add_f32 {T[1]}, 0x{f2u(BIAS):x}, {T[1]}")
                for r in range(4): P(f"v_sub_f32 v{NM + qt*4 + r}, 0, {T[1]}")
                for kt in range(2):
                    for r in range(4): P(f"v_sub_f32 v{S(kt, qt) + r}, v{S(kt, qt) + r}, {T[1]}")
                run(softmax_ops(qt, ORR, qt == 0))
        else:
            run(softmax_ops(4, ORR, False))
            P(f"v_and_b32 {ORR}, s{S_MASK}, {ORR}")
            P(f"v_cmp_ne_u32 vcc, 0, {ORR}")
            lab = f"L_ok_{i}"
            P(f"s_cbranch_vccz {lab}")
            P(f"s_call_b64 s[{S_RET}:{S_RET+1}], L_rescale")
            P.label(lab)
        P.c(f"block {i} PV")
        P("s_waitcnt lgkmcnt(0)")
        dmV = dma_kv("V", i + 2, SLOT_V[par]) if issue else []
        mf = []
        for qt in range(5):
            for dt in range(8):
                o = Oa(dt, qt)
                c = "0" if first else ar(o)
                mf.append(f"v_mfma_f32_16x16x32_bf16 {ar(o)}, {vr(VF + dt*4)}, {vr(P0 + qt*4)}, {c}")
            c = "0" if first else vr(LL + qt * 4)
            mf.append(f"v_mfma_f32_16x16x32_bf16 {vr(LL + qt*4)}, {vr(ONES)}, {vr(P0 + qt*4)}, {c}")
        fill = list(dmV)
        tail = []
        if not last:
            tail = [lambda: vq.wait(P, f"K{i+1}")] + rd_K(SLOT_K[(i + 1) & 1])
        interleave(P, mf[:27], fill)
        interleave(P, mf[27:], tail)

    stamp()
    vq.wait(P, "K0"); run(rd_K(SLOT_K[0]))
    block(0, first=True)
    stamp()
    block(1)
    stamp()
    P(f"s_mov_b32 s{S_CNT}, 0")
    qsave = [x for x in vq.q]
    P.label("L_attn_loop")
    block(2); block(3)
    def shape(q, base): return [(x[0], int(x[1:]) - base) for x in q]
    assert shape(qsave, 2) == shape(vq.q, 4), (qsave, vq.q)
    P(f"s_add_u32 s{S_CNT}, s{S_CNT}, 1"); P(f"s_cmp_lt_u32 s{S_CNT}, 6"); P("s_cbranch_scc1 L_attn_loop")
    vq.q = [f"{x[0]}{int(x[1:]) - 4 + 14}" for x in vq.q]
    block(14, issue=False); block(15, issue=False, last=True)
    stamp(); stamp("clk")
    P.c("epilogue")
    for qt in range(5): P(f"v_rcp_f32 v{NM + qt}, v{LL + qt*4}")
    P(f"v_lshlrev_b32 {T[0]}, 4, {L}")
    n = 0
    for qt in range(5):
        for s in range(4):
            e = S0 + (n % 4) * 8; n += 1
            P(f"s_add_u32 s{t[0]}, s{S_OB}, {s*81920 + qt*1024}")
            for r in range(4): P(f"v_accvgpr_read_b32 v{e+r}, a{Oa(2*s, qt)+r}")
            for r in range(4): P(f"v_accvgpr_read_b32 v{e+4+r}, a{Oa(2*s+1, qt)+r}")
            for r in range(8): P(f"v_mul_f32 v{e+r}, v{e+r}, v{NM+qt}")
            P(f"v_cvt_pk_bf16_f32 v{e}, v{e}, v{e+1}"); P(f"v_cvt_pk_bf16_f32 v{e+1}, v{e+2}, v{e+3}")
            P(f"v_cvt_pk_bf16_f32 v{e+2}, v{e+4}, v{e+5}"); P(f"v_cvt_pk_bf16_f32 v{e+3}, v{e+6}, v{e+7}")
            P(f"buffer_store_dwordx4 {vr(e)}, {T[0]}, s[{S_SRDO}:{S_SRDO+3}], s{t[0]} offen{' sc1' if opts.get('merge') else opts.get('ost', '').replace('_', ' ')}")
    if stamps and nst[0] > 0:
        P("s_waitcnt vmcnt(0)")
        stamp()
        P("s_waitcnt lgkmcnt(0)")
        for i in range(8): P(f"v_mov_b32 v{4+i}, s{80+2*min(i, nst[0]-1)}")
        P(f"s_lshl_b32 s{t[0]}, s2, 2"); P(f"s_add_u32 s{t[0]}, s{t[0]}, s{S_W}"); P(f"s_lshl_b32 s{t[0]}, s{t[0]}, 5")
        P(f"s_add_u32 s76, s72, 0x4000000"); P("s_addc_u32 s77, s73, 0"); P("s_mov_b32 s78, 0x100000"); P("s_mov_b32 s79, 0x20000")
        P(f"v_mov_b32 v12, s{t[0]}"); P(f"v_cmp_eq_u32 vcc, 0, {L}"); P("s_and_saveexec_b64 s[74:75], vcc")
        P("buffer_store_dwordx4 v[4:7], v12, s[76:79], 0 offen")
        P("buffer_store_dwordx4 v[8:11], v12, s[76:79], 0 offen offset:16")
        P("s_mov_b64 exec, s[74:75]")
    if opts.get("merge"):
        import k2
        P(f"s_lshl_b32 s{t[0]}, s{S_P}, 5"); P(f"s_lshr_b32 s{t[1]}, s{S_B}, 1"); P(f"s_lshl_b32 s{t[1]}, s{t[1]}, 2"); P(f"s_add_u32 s{t[0]}, s{t[0]}, s{t[1]}")
        P(f"s_lshr_b32 s{t[1]}, s{S_H}, 3"); P(f"s_add_u32 s{t[0]}, s{t[0]}, s{t[1]}"); P(f"s_lshl_b32 s{t[0]}, s{t[0]}, 2")
        P("s_load_dwordx2 s[70:71], s[0:1], 88")
        P("s_waitcnt vmcnt(0) lgkmcnt(0)"); P("s_barrier")
        P(f"s_cmp_lg_u32 s{S_W}, 0"); P("s_cbranch_scc1 L_k1_sig")
        P("s_mov_b32 s20, s70"); P("s_mov_b32 s21, s71"); P("s_mov_b32 s22, 256"); P("s_mov_b32 s23, 0x20000")
        P(f"v_mov_b32 {T[1]}, s{t[0]}"); P(f"v_mov_b32 {T[2]}, 1")
        P(f"v_cmp_eq_u32 vcc, 0, {L}"); P("s_and_saveexec_b64 s[74:75], vcc")
        P(f"buffer_atomic_add {T[2]}, {T[1]}, s[20:23], 0 offen")
        P("s_mov_b64 exec, s[74:75]")
        P.label("L_k1_sig")
        k2.gen_k2(P, opts, merged=True)
    P.label("L_k1_done")
    P("s_endpgm")
    P.label("L_rescale")
    P("s_nop 7"); P("s_nop 7")
    for qt in range(5):
        colmax(qt, T[1], T[2])
        P(f"v_add_f32 {T[1]}, 0x{f2u(BIAS):x}, {T[1]}"); P(f"v_max_f32 {T[1]}, 0, {T[1]}")
        P(f"v_sub_f32 {T[2]}, 0, {T[1]}"); P(f"v_exp_f32 {T[2]}, {T[2]}")
        for r in range(4): P(f"v_sub_f32 v{NM + qt*4 + r}, v{NM + qt*4 + r}, {T[1]}")
        for kt in range(2):
            for r in range(4): P(f"v_sub_f32 v{S(kt, qt) + r}, v{S(kt, qt) + r}, {T[1]}")
        for r in range(4): P(f"v_mul_f32 v{LL + qt*4 + r}, v{LL + qt*4 + r}, {T[2]}")
        for dt in range(8):
            for r in range(4): P(f"v_accvgpr_read_b32 v{ET + r}, a{Oa(dt, qt) + r}")
            for r in range(4): P(f"v_mul_f32 v{ET + r}, v{ET + r}, {T[2]}")
            for r in range(4): P(f"v_accvgpr_write_b32 a{Oa(dt, qt) + r}, v{ET + r}")
        run(softmax_ops(qt, ORR, True))
    P("s_nop 7")
    P(f"s_setpc_b64 s[{S_RET}:{S_RET+1}]")

def desc(name, vgpr, accum, sgpr=100):
    return f""".section .rodata,"a"
.p2align 6
.amdhsa_kernel {name}
  .amdhsa_next_free_vgpr {vgpr}
  .amdhsa_next_free_sgpr {sgpr}
  .amdhsa_accum_offset {accum}
  .amdhsa_group_segment_fixed_size 0
  .amdhsa_kernarg_size 104
  .amdhsa_user_sgpr_count 2
  .amdhsa_user_sgpr_kernarg_segment_ptr 1
  .amdhsa_system_sgpr_workgroup_id_x 1
.end_amdhsa_kernel
"""
```

```python
from asmlib import *
from k1 import vr, ar, VQ, f2u

NBUF = 4
OST = 8192
WST = 12288
WBASE = NBUF * OST
LDS = NBUF * (OST + WST)
NVGPR = 256
EX_OFF = 0x2000000

ACC = 32
BF = 128
AF = 160
V_OA = 1
V_WA = [2, 3, 4, 5, 6, 7]
V_OG = 8
V_WG = [9, 10, 11]
V_T = list(range(12, 32))
def A_(rt, nt): return ACC + (rt * 6 + nt) * 4
def BFr(s, rt): return BF + s * 16 + rt * 4
def AFr(s, nt): return AF + s * 24 + nt * 4

S_SRDO, S_SRDW, S_SRDX, S_SRDOUT, S_SRDD = 4, 8, 12, 16, 20
S_W, S_P, S_KQ, S_MT, S_N3 = 24, 25, 26, 27, 28
S_OG = [29, 30]
S_KS = 31
S_KW = 32
S_WGB = 33
S_RHO = 34
S_T = list(range(40, 56))

def gen_k2(P, opts={}, merged=False):
    name = "oproj_kernel"
    stamps = opts.get("stamps", False) and opts.get("stgrp") in ("none", "k2")
    vq = VQ()
    t = S_T
    if not merged:
        P.raw(f".globl {name}\n.p2align 8\n.type {name},@function\n{name}:")
    P("s_cmp_ge_u32 s2, 240"); P("s_cbranch_scc1 L_k2_done")
    nst = [0]
    def stamp():
        if stamps and nst[0] < 8:
            P(f"s_memrealtime s[{80+2*nst[0]}:{81+2*nst[0]}]"); nst[0] += 1
    stamp()
    P(f"s_and_b32 s{t[0]}, s2, 7"); P(f"s_lshr_b32 s{S_P}, s{t[0]}, 2"); P(f"s_and_b32 s{S_KQ}, s{t[0]}, 3")
    P(f"s_lshr_b32 s{t[1]}, s2, 3")
    P(f"s_mul_hi_u32 s{S_MT}, s{t[1]}, 0x55555556"); P(f"s_mul_i32 s{t[2]}, s{S_MT}, 3"); P(f"s_sub_u32 s{S_N3}, s{t[1]}, s{t[2]}")
    P(f"s_mul_i32 s{t[4]}, s{S_P}, 40"); P(f"s_add_u32 s{t[6]}, s0, s{t[4]}"); P(f"s_addc_u32 s{t[7]}, s1, 0")
    assert t[6] % 2 == 0
    P(f"s_load_dwordx2 s[64:65], s[{t[6]}:{t[7]}], 32")
    P(f"s_load_dwordx4 s[68:71], s[0:1], 80")
    P(f"s_load_dwordx2 s[72:73], s[0:1], 96")
    if not merged:
        P("v_lshrrev_b32 v1, 6, v0"); P("v_and_b32 v0, 63, v0"); P(f"v_readfirstlane_b32 s{S_W}, v1")
    T = [f"v{x}" for x in V_T]
    P(f"s_lshl_b32 s{t[2]}, s{S_P}, 7"); P(f"s_lshl_b32 s{t[3]}, s{S_KQ}, 5"); P(f"s_add_u32 s{t[2]}, s{t[2]}, s{t[3]}"); P(f"s_mul_i32 s{t[2]}, s{t[2]}, 80")
    P(f"s_lshl_b32 s{t[3]}, s{S_MT}, 3"); P(f"s_add_u32 s{t[2]}, s{t[2]}, s{t[3]}")
    P(f"s_lshl_b32 s{t[3]}, s{S_W}, 1"); P(f"s_add_u32 s{t[2]}, s{t[2]}, s{t[3]}")
    P(f"s_lshl_b32 s{S_OG[0]}, s{t[2]}, 10")
    pol = opts.get("k2rot", "lat")
    if pol == "lat":
        P(f"s_mul_i32 s{t[2]}, s{S_N3}, 171"); P(f"s_lshr_b32 s{t[2]}, s{t[2]}, 4")
        P(f"s_mul_i32 s{t[3]}, s{S_MT}, 205"); P(f"s_lshr_b32 s{t[3]}, s{t[3]}, 6")
        P(f"s_add_u32 s{t[2]}, s{t[2]}, s{t[3]}"); P(f"s_and_b32 s{S_RHO}, s{t[2]}, 31")
    elif pol == "t":
        P(f"s_mov_b32 s{S_RHO}, s{t[1]}")
    elif pol == "n3":
        P(f"s_mul_i32 s{t[2]}, s{S_N3}, 171"); P(f"s_lshr_b32 s{t[2]}, s{t[2]}, 4"); P(f"s_add_u32 s{t[2]}, s{t[2]}, s{S_MT}"); P(f"s_and_b32 s{S_RHO}, s{t[2]}, 31")
    P(f"s_mul_i32 s{S_KS}, s{S_RHO}, 81920"); P(f"s_add_u32 s{S_KS}, s{S_KS}, s{S_OG[0]}"); P(f"s_mul_i32 s{S_KW}, s{S_RHO}, {32*1152}")
    P(f"s_add_u32 s{S_OG[1]}, s{S_OG[0]}, {32*81920}")
    P(f"s_mul_i32 s{S_WGB}, s{S_KQ}, {1024*1152}"); P(f"s_mul_i32 s{t[2]}, s{S_N3}, 384"); P(f"s_add_u32 s{S_WGB}, s{S_WGB}, s{t[2]}")
    P(f"s_mul_i32 s{t[2]}, s{S_W}, {8*1152}"); P(f"s_add_u32 s{S_WGB}, s{S_WGB}, s{t[2]}")
    L = "v0"
    P(f"v_lshlrev_b32 v{V_OG}, 4, {L}")
    for u in range(3):
        P(f"v_add_u32 {T[0]}, {64*u}, {L}")
        P(f"v_mul_u32_u24 {T[1]}, 2731, {T[0]}"); P(f"v_lshrrev_b32 {T[1]}, 16, {T[1]}")
        P(f"v_mul_u32_u24 {T[2]}, 24, {T[1]}"); P(f"v_sub_u32 {T[2]}, {T[0]}, {T[2]}")
        P(f"v_lshrrev_b32 {T[3]}, 1, {T[1]}"); P(f"v_and_b32 {T[3]}, 3, {T[3]}"); P(f"v_lshlrev_b32 {T[3]}, 1, {T[3]}")
        P(f"v_xor_b32 {T[2]}, {T[2]}, {T[3]}"); P(f"v_lshlrev_b32 {T[2]}, 4, {T[2]}")
        P(f"v_mul_u32_u24 {T[1]}, 1152, {T[1]}"); P(f"v_add_u32 {T[1]}, {T[1]}, {T[2]}")
        P(f"v_add_u32 v{V_WG[u]}, s{S_WGB}, {T[1]}")
    P(f"s_lshr_b32 s{t[2]}, s{S_W}, 1"); P(f"s_lshl_b32 s{t[2]}, s{t[2]}, 12"); P(f"v_add_u32 v{V_OA}, s{t[2]}, v{V_OG}")
    P(f"v_lshrrev_b32 {T[0]}, 4, {L}"); P(f"v_and_b32 {T[1]}, 15, {L}"); P(f"v_lshrrev_b32 {T[1]}, 2, {T[1]}")
    P(f"v_lshlrev_b32 {T[2]}, 2, {T[0]}"); P(f"v_add_u32 {T[2]}, {T[2]}, {T[1]}")
    P(f"v_lshrrev_b32 {T[3]}, 1, {T[2]}"); P(f"v_and_b32 {T[3]}, 3, {T[3]}"); P(f"v_lshlrev_b32 {T[3]}, 1, {T[3]}")
    P(f"v_mul_u32_u24 {T[4]}, 384, {T[2]}")
    P(f"v_and_b32 {T[5]}, 3, {L}"); P(f"v_lshrrev_b32 {T[6]}, 1, {T[5]}"); P(f"v_and_b32 {T[5]}, 1, {T[5]}"); P(f"v_lshlrev_b32 {T[5]}, 3, {T[5]}")
    P(f"v_add_u32 {T[4]}, {T[4]}, {T[5]}"); P(f"v_add_u32 {T[4]}, {WBASE}, {T[4]}")
    P(f"s_and_b32 s{t[2]}, s{S_W}, 1"); P(f"s_mul_i32 s{t[2]}, s{t[2]}, 12")
    for nt in range(6):
        P(f"s_add_u32 s{t[3]}, s{t[2]}, {2*nt}"); P(f"v_add_u32 {T[7]}, s{t[3]}, {T[6]}"); P(f"v_xor_b32 {T[7]}, {T[7]}, {T[3]}")
        P(f"v_lshlrev_b32 {T[7]}, 4, {T[7]}"); P(f"v_add_u32 v{V_WA[nt]}, {T[7]}, {T[4]}")
    P("s_waitcnt lgkmcnt(0)")
    P(f"s_mov_b32 s{S_SRDO}, s72"); P(f"s_mov_b32 s{S_SRDO+1}, s73"); P(f"s_mov_b32 s{S_SRDO+2}, {2*80*128*1024}"); P(f"s_mov_b32 s{S_SRDO+3}, 0x20000")
    P(f"s_mov_b32 s{S_SRDW}, s64"); P(f"s_mov_b32 s{S_SRDW+1}, s65"); P(f"s_mov_b32 s{S_SRDW+2}, {4096*1152}"); P(f"s_mov_b32 s{S_SRDW+3}, 0x20000")
    P(f"s_add_u32 s{S_SRDX}, s72, {EX_OFF}"); P(f"s_addc_u32 s{S_SRDX+1}, s73, 0"); P(f"s_mov_b32 s{S_SRDX+2}, {4*1280*2304}"); P(f"s_mov_b32 s{S_SRDX+3}, 0x20000")
    P(f"s_mov_b32 s{S_SRDOUT}, s68"); P(f"s_mov_b32 s{S_SRDOUT+1}, s69"); P(f"s_mov_b32 s{S_SRDOUT+2}, {1280*2304}"); P(f"s_mov_b32 s{S_SRDOUT+3}, 0x20000")
    P(f"s_mov_b32 s{S_SRDD}, s70"); P(f"s_mov_b32 s{S_SRDD+1}, s71"); P(f"s_mov_b32 s{S_SRDD+2}, 256"); P(f"s_mov_b32 s{S_SRDD+3}, 0x20000")

    osc = " sc1" if merged else opts.get('o2fl','').replace('_',' ')
    def dma_stage(i, part="ow"):
        buf = i % NBUF; tag = f"S{i}"
        def dm(txt):
            def f(): P(txt); vq.push(tag)
            return f
        out = []
        if "o" in part:
            out.append(f"s_add_u32 m0, s{t[12]}, {buf*OST}")
            out.append(dm(f"buffer_load_dwordx4 v{V_OG}, s[{S_SRDO}:{S_SRDO+3}], s{S_KS} offen{osc} lds"))
            out.append(dm(f"buffer_load_dwordx4 v{V_OG}, s[{S_SRDO}:{S_SRDO+3}], s{S_KS} offen offset:1024{osc} lds"))
            out += [f"s_add_u32 s{S_KS}, s{S_KS}, 81920", [f"s_cmp_eq_u32 s{S_KS}, s{S_OG[1]}", f"s_cselect_b32 s{S_KS}, s{S_OG[0]}, s{S_KS}"]]
        if "w" in part:
            for u in range(3):
                out.append(f"s_add_u32 m0, s{t[13]}, {buf*WST + u*1024}")
                out.append(dm(f"buffer_load_dwordx4 v{V_WG[u]}, s[{S_SRDW}:{S_SRDW+3}], s{S_KW} offen{opts.get('w2fl','').replace('_',' ')} lds"))
            out += [f"s_add_u32 s{S_KW}, s{S_KW}, {32*1152}", [f"s_cmp_eq_u32 s{S_KW}, {32*32*1152}", f"s_cselect_b32 s{S_KW}, 0, s{S_KW}"]]
        return out
    def run(l):
        for x in l:
            if callable(x): x()
            elif isinstance(x, list): run(x)
            else: P(x)
    def rd_stage(i):
        buf = i % NBUF; fs = i & 1
        out = []
        for rt in range(4): out.append(f"ds_read_b128 {vr(BFr(fs, rt))}, v{V_OA} offset:{buf*OST + rt*1024}")
        for nt in range(6):
            out.append(("tr", nt, 0)); out.append(("tr", nt, 1))
        res = []
        for o in out:
            if isinstance(o, tuple):
                _, nt, h = o
                off = buf * WST + h * 16 * 384
                res.append(f"ds_read_b64_tr_b16 {vr(AFr(fs, nt) + 2*h, 2)}, v{V_WA[nt]} offset:{off}")
            else: res.append(o)
        return [res[0], res[4], res[5]] + res[1:4] + res[6:]
    P(f"s_lshl_b32 s{t[12]}, s{S_W}, 11")
    P(f"s_mul_i32 s{t[13]}, s{S_W}, 3072"); P(f"s_add_u32 s{t[13]}, s{t[13]}, {WBASE}")
    NK = 32; LA = 3
    P.autolgkm = True
    if merged:
        for i in range(LA): run(dma_stage(i, "w"))
        P(f"s_cmp_lg_u32 s{S_W}, 0"); P("s_cbranch_scc1 L_k2_ready")
        P(f"s_lshl_b32 s{t[0]}, s{S_MT}, 7"); P(f"s_add_u32 s{t[1]}, s{t[0]}, 127")
        P(f"s_mul_i32 s{t[0]}, s{t[0]}, 52429"); P(f"s_lshr_b32 s{t[0]}, s{t[0]}, 23")
        P(f"s_mul_i32 s{t[1]}, s{t[1]}, 52429"); P(f"s_lshr_b32 s{t[1]}, s{t[1]}, 23")
        P(f"s_lshl_b32 s{t[2]}, s{S_P}, 5"); P(f"s_add_u32 s{t[2]}, s{t[2]}, s{S_KQ}")
        P(f"s_lshl_b32 s{t[0]}, s{t[0]}, 2"); P(f"s_add_u32 s{t[0]}, s{t[0]}, s{t[2]}"); P(f"s_lshl_b32 s{t[0]}, s{t[0]}, 2")
        P(f"s_lshl_b32 s{t[1]}, s{t[1]}, 2"); P(f"s_add_u32 s{t[1]}, s{t[1]}, s{t[2]}"); P(f"s_lshl_b32 s{t[1]}, s{t[1]}, 2")
        P(f"v_mov_b32 {T[8]}, s{t[0]}"); P(f"v_mov_b32 {T[9]}, s{t[1]}"); P(f"v_cmp_eq_u32 vcc, 0, {L}")
        P(f"v_cndmask_b32 {T[8]}, {T[9]}, {T[8]}, vcc")
        P(f"s_mov_b32 s{t[3]}, 0")
        P.label("L_k2_poll")
        P(f"buffer_load_dword {T[9]}, {T[8]}, s[{S_SRDD}:{S_SRDD+3}], 0 offen sc1")
        P("s_waitcnt vmcnt(0)")
        P(f"v_cmp_gt_u32 vcc, 4, {T[9]}")
        P("s_cbranch_vccz L_k2_ready")
        P("s_sleep 1")
        P(f"s_add_u32 s{t[3]}, s{t[3]}, 1"); P(f"s_cmp_lt_u32 s{t[3]}, 400000"); P("s_cbranch_scc1 L_k2_poll")
        P.label("L_k2_ready")
        P("s_barrier")
        for i in range(LA): run(dma_stage(i, "o"))
    else:
        for i in range(LA): run(dma_stage(i))
    stamp()
    vq.wait(P, "S0"); P("s_barrier"); run(rd_stage(0))
    for i in range(NK):
        fs = i & 1
        mf = []
        for nt in range(6):
            for rt in range(4):
                a = A_(rt, nt); c = "0" if i == 0 else vr(a)
                mf.append(f"v_mfma_f32_16x16x32_bf16 {vr(a)}, {vr(AFr(fs, nt))}, {vr(BFr(fs, rt))}, {c}")
        hd = int(opts.get("k2head", 2))
        for m in mf[:hd]: P(m)
        if i + 1 < NK: vq.wait(P, f"S{i+1}")
        P("s_barrier")
        dm = dma_stage(i + LA) if i + LA < NK else []
        rd = rd_stage(i + 1) if i + 1 < NK else []
        fill = []; di = ri = 0
        while di < len(dm) or ri < len(rd):
            if ri < len(rd): fill.append(rd[ri]); ri += 1
            if di < len(dm): fill.append(dm[di]); di += 1
        interleave(P, mf[hd:], fill)
        if i in (0, 15): stamp()
    P("s_waitcnt lgkmcnt(0)")
    P.autolgkm = False
    stamp()
    P(f"s_lshl_b32 s{t[3]}, s{S_MT}, 3"); P(f"s_lshr_b32 s{t[4]}, s{S_W}, 1"); P(f"s_lshl_b32 s{t[4]}, s{t[4]}, 2"); P(f"s_add_u32 s{t[3]}, s{t[3]}, s{t[4]}")
    P(f"s_mul_i32 s{t[3]}, s{t[3]}, {16*2304}")
    P(f"s_mul_i32 s{t[4]}, s{S_KQ}, {1280*2304}"); P(f"s_add_u32 s{t[3]}, s{t[3]}, s{t[4]}")
    P(f"s_mul_i32 s{t[4]}, s{S_P}, 1152"); P(f"s_add_u32 s{t[3]}, s{t[3]}, s{t[4]}")
    P(f"s_mul_i32 s{t[4]}, s{S_N3}, 384"); P(f"s_add_u32 s{t[3]}, s{t[3]}, s{t[4]}")
    P(f"s_and_b32 s{t[4]}, s{S_W}, 1"); P(f"s_mul_i32 s{t[4]}, s{t[4]}, 192"); P(f"s_add_u32 s{t[3]}, s{t[3]}, s{t[4]}")
    P(f"v_and_b32 {T[1]}, 15, {L}"); P(f"v_mul_u32_u24 {T[1]}, 2304, {T[1]}"); P(f"v_lshrrev_b32 {T[2]}, 4, {L}"); P(f"v_lshlrev_b32 {T[2]}, 4, {T[2]}")
    P(f"v_add_u32 {T[1]}, {T[1]}, {T[2]}")
    for rt in range(4):
        for u in range(3):
            A = A_(rt, 2*u); B = A_(rt, 2*u + 1)
            P(f"v_cvt_pk_bf16_f32 v{A}, v{A}, v{A+1}"); P(f"v_cvt_pk_bf16_f32 v{A+1}, v{A+2}, v{A+3}")
            P(f"v_cvt_pk_bf16_f32 v{B}, v{B}, v{B+1}"); P(f"v_cvt_pk_bf16_f32 v{B+1}, v{B+2}, v{B+3}")
        for u in range(3):
            A = A_(rt, 2*u); B = A_(rt, 2*u + 1)
            P(f"v_permlane32_swap_b32 v{A}, v{B}"); P(f"v_permlane32_swap_b32 v{A+1}, v{B+1}")
        for u in range(3):
            A = A_(rt, 2*u); B = A_(rt, 2*u + 1)
            P(f"v_permlane16_swap_b32 v{A}, v{B}"); P(f"v_permlane16_swap_b32 v{A+1}, v{B+1}")
        for u in range(3):
            A = A_(rt, 2*u); B = A_(rt, 2*u + 1)
            P(f"v_mov_b32 v{A+2}, v{B}"); P(f"v_mov_b32 v{A+3}, v{B+1}")
        for u in range(3):
            A = A_(rt, 2*u)
            P(f"buffer_store_dwordx4 {vr(A)}, {T[1]}, s[{S_SRDX}:{S_SRDX+3}], s{t[3]} offen offset:{u*64}{opts.get('pst', '').replace('_', ' ')}")
        if rt < 3: P(f"s_add_u32 s{t[3]}, s{t[3]}, {16*2304}")
    if stamps:
        P("s_waitcnt vmcnt(0)")
        stamp()
        P("s_waitcnt lgkmcnt(0)")
        for i in range(8): P(f"v_mov_b32 v{4+i}, s{80+2*min(i, nst[0]-1)}")
        P(f"s_lshl_b32 s{t[0]}, s2, 2"); P(f"s_add_u32 s{t[0]}, s{t[0]}, s{S_W}"); P(f"s_lshl_b32 s{t[0]}, s{t[0]}, 5")
        P(f"s_add_u32 s76, s72, 0x4100000"); P("s_addc_u32 s77, s73, 0"); P("s_mov_b32 s78, 0x100000"); P("s_mov_b32 s79, 0x20000")
        P(f"v_mov_b32 v12, s{t[0]}"); P(f"v_cmp_eq_u32 vcc, 0, {L}"); P("s_and_saveexec_b64 s[74:75], vcc")
        P("buffer_store_dwordx4 v[4:7], v12, s[76:79], 0 offen")
        P("buffer_store_dwordx4 v[8:11], v12, s[76:79], 0 offen offset:16")
    P.label("L_k2_done")
    P("s_endpgm")

def gen_k3(P, opts={}):
    name = "reduce_kernel"
    P.raw(f".globl {name}\n.p2align 8\n.type {name},@function\n{name}:")
    P("s_cmp_ge_u32 s2, 720"); P("s_cbranch_scc1 L_k3_done")
    P("s_load_dwordx2 s[4:5], s[0:1], 80"); P("s_load_dwordx2 s[6:7], s[0:1], 96")
    P("v_lshlrev_b32 v1, 4, v0"); P("s_lshl_b32 s3, s2, 12")
    P("s_waitcnt lgkmcnt(0)")
    P(f"s_add_u32 s8, s6, {EX_OFF}"); P("s_addc_u32 s9, s7, 0"); P(f"s_mov_b32 s10, {4*1280*2304}"); P("s_mov_b32 s11, 0x20000")
    P("s_mov_b32 s12, s4"); P("s_mov_b32 s13, s5"); P(f"s_mov_b32 s14, {1280*2304}"); P("s_mov_b32 s15, 0x20000")
    for k in range(4):
        if k: P(f"s_add_u32 s16, s3, {k*1280*2304}")
        so = "s3" if k == 0 else "s16"
        P(f"buffer_load_dwordx4 v[{4+4*k}:{7+4*k}], v1, s[8:11], {so} offen{opts.get('k3ld', '').replace('_', ' ')}")
    P("s_mov_b32 s17, 0xffff0000")
    for k in range(4):
        P(f"s_waitcnt vmcnt({3-k})")
        for j in range(4):
            src = 4 + 4*k + j
            if k == 0:
                P(f"v_lshlrev_b32 v{20+j}, 16, v{src}"); P(f"v_and_b32 v{24+j}, s17, v{src}")
            else:
                P(f"v_lshlrev_b32 v28, 16, v{src}"); P(f"v_and_b32 v29, s17, v{src}")
                P(f"v_add_f32 v{20+j}, v{20+j}, v28"); P(f"v_add_f32 v{24+j}, v{24+j}, v29")
    for j in range(4): P(f"v_cvt_pk_bf16_f32 v{4+j}, v{20+j}, v{24+j}")
    P("buffer_store_dwordx4 v[4:7], v1, s[12:15], s3 offen")
    P.label("L_k3_done")
    P("s_endpgm")
```

```python
import sys
from asmlib import *
import k1
HDR = open("concat_heads__gqa_block_cached__mha_block_cached__near_ridge.s.ref").read().split("\n")
hdr = [l for l in HDR if l.startswith(";") and "@launch" not in l and "Override launch" not in l and "grid=ceil" not in l]
def build(opts):
    P = Prog()
    launches = []
    body = []
    launches.append("; @launch kernel=attn_kernel grid=(256,1,1) block=(256,1,1) lds=163840")
    k1.gen_k1(P, nt=opts.get("nt", " nt"), stamps=opts.get("stamps", False), opts=opts)
    descs = k1.desc("attn_kernel", 512, 256)
    if opts.get("k2", True):
        import k2
        if not opts.get("merge"):
            launches.append(f"; @launch kernel=oproj_kernel grid=(256,1,1) block=(256,1,1) lds={k2.LDS}")
            k2.gen_k2(P, opts)
            descs += k1.desc("oproj_kernel", k2.NVGPR, k2.NVGPR)
        launches.append("; @launch kernel=reduce_kernel grid=(720,1,1) block=(256,1,1) lds=0")
        k2.gen_k3(P, opts)
        descs += k1.desc("reduce_kernel", 32, 32, 32)
    errs = P.check_branches()
    for e in errs: print("BRANCH HAZARD:", e, file=sys.stderr)
    txt = "\n".join(hdr[:14]) + "\n" + "\n".join(launches) + "\n" + '.amdgcn_target "amdgcn-amd-amdhsa--gfx950"\n.text\n' + P.text() + descs
    print(f"instructions: {sum(1 for k, v in P.items if k == 'i')}, auto nops: {P.nops}", file=sys.stderr)
    return txt
if __name__ == "__main__":
    out = sys.argv[1]
    opts = {}
    for a in sys.argv[2:]:
        k, v = a.split("=")
        opts[k] = {"1": True, "0": False}.get(v, v)
    open(out, "w").write(build(opts))
```

```python
from asmlib import *
from k1 import vr, ar, VQ, f2u
import k2
from k2 import NBUF, OST, WST, WBASE, EX_OFF, ACC, BF, AF, V_OA, V_WA, V_OG, V_WG, V_T, A_, BFr, AFr

S_SRDO, S_SRDW, S_SRDX, S_SRDOUT, S_SRDD = 4, 8, 12, 16, 20
S_W, S_P, S_KQ, S_MT, S_N3 = 24, 25, 26, 27, 28
S_OG0 = 29
S_KSC, S_KWC, S_KSN, S_KWN = 30, 31, 32, 33
S_WGB = 34
S_DONE = 35
S_TK = 36
S_SEG = 37
S_OL, S_WL = 38, 39
S_NONCE = 66
S_T = list(range(40, 56))
FLAG_OFF = 0x3000000
SEL = 81920 + 64

def gen_g2(P, opts, S1):
    stamps = opts.get("stamps", False) and opts.get("stgrp") in ("k2", "all")
    nst = opts.setdefault("_nst", [0])
    def stamp():
        if stamps and nst[0] < 8:
            P(f"s_memrealtime s[{80+2*nst[0]}:{81+2*nst[0]}]"); nst[0] += 1
    vq = VQ(); t = S_T
    T = [f"v{x}" for x in V_T]; L = "v0"
    P(f"s_lshl_b32 s{t[0]}, s{S1['P']}, 3"); P(f"s_lshr_b32 s{t[1]}, s{S1['B']}, 1"); P(f"s_add_u32 s{t[0]}, s{t[0]}, s{t[1]}"); P(f"s_lshl_b32 s{t[0]}, s{t[0]}, 4")
    P(f"s_lshr_b32 s{t[1]}, s{S1['H']}, 1"); P(f"s_add_u32 s{t[0]}, s{t[0]}, s{t[1]}"); P(f"s_lshl_b32 s{t[0]}, s{t[0]}, 7")
    P("s_load_dwordx4 s[68:71], s[0:1], 80")
    P("s_load_dwordx2 s[72:73], s[0:1], 96")
    P(f"s_and_b32 s{t[2]}, s2, 7"); P(f"s_lshr_b32 s{S_P}, s{t[2]}, 2"); P(f"s_and_b32 s{S_KQ}, s{t[2]}, 3")
    P(f"s_mul_i32 s{t[4]}, s{S_P}, 40"); P(f"s_add_u32 s{t[6]}, s0, s{t[4]}"); P(f"s_addc_u32 s{t[7]}, s1, 0")
    P(f"s_load_dwordx2 s[64:65], s[{t[6]}:{t[7]}], 32")
    P("s_waitcnt vmcnt(0) lgkmcnt(0)")
    P(f"s_mov_b32 s{S_SRDD}, s70"); P(f"s_mov_b32 s{S_SRDD+1}, s71"); P(f"s_mov_b32 s{S_SRDD+2}, 256"); P(f"s_mov_b32 s{S_SRDD+3}, 0x20000")
    P(f"s_mov_b32 s{t[5]}, 0")
    P.label("L_g2_nonce")
    P(f"v_readfirstlane_b32 s{S_NONCE}, v234")
    P(f"s_cmp_lg_u32 s{S_NONCE}, 0"); P("s_cbranch_scc1 L_g2_nonce_ok")
    P(f"v_mov_b32 v235, 0")
    P(f"buffer_load_dword v234, v235, s[{S_SRDD}:{S_SRDD+3}], 0 offen sc1"); P("s_waitcnt vmcnt(0)")
    P(f"s_add_u32 s{t[5]}, s{t[5]}, 1"); P(f"s_cmp_lt_u32 s{t[5]}, 400000"); P("s_cbranch_scc1 L_g2_nonce")
    P.label("L_g2_nonce_ok")
    P("s_barrier")
    stamp()
    P(f"s_add_u32 s{S_SRDD}, s72, {FLAG_OFF}"); P(f"s_addc_u32 s{S_SRDD+1}, s73, 0"); P(f"s_mov_b32 s{S_SRDD+2}, {512*128}"); P(f"s_mov_b32 s{S_SRDD+3}, 0x20000")
    P(f"v_mov_b32 {T[14]}, {SEL + 64}")
    P(f"s_cmp_lg_u32 s{S_W}, 0"); P("s_cbranch_scc1 L_g2_sig")
    P(f"v_mov_b32 {T[1]}, s{t[0]}"); P(f"v_mov_b32 {T[2]}, s{S_NONCE}")
    P(f"v_cmp_eq_u32 vcc, 0, {L}"); P("s_and_saveexec_b64 s[74:75], vcc")
    P(f"buffer_store_dword {T[2]}, {T[1]}, s[{S_SRDD}:{S_SRDD+3}], 0 offen sc1")
    P("s_mov_b64 exec, s[74:75]")
    P.label("L_g2_sig")
    P(f"s_lshr_b32 s{S_TK}, s2, 3")
    P(f"s_cmp_ge_u32 s{S_TK}, 30"); P("s_cbranch_scc1 L_g2_done")
    P(f"s_mul_hi_u32 s{S_MT}, s{S_TK}, 0x55555556"); P(f"s_mul_i32 s{t[2]}, s{S_MT}, 3"); P(f"s_sub_u32 s{S_N3}, s{S_TK}, s{t[2]}")
    P(f"s_lshl_b32 s{t[2]}, s{S_P}, 7"); P(f"s_lshl_b32 s{t[3]}, s{S_KQ}, 5"); P(f"s_add_u32 s{t[2]}, s{t[2]}, s{t[3]}"); P(f"s_mul_i32 s{t[2]}, s{t[2]}, 80")
    P(f"s_lshl_b32 s{t[3]}, s{S_MT}, 3"); P(f"s_add_u32 s{t[2]}, s{t[2]}, s{t[3]}")
    P(f"s_lshl_b32 s{t[3]}, s{S_W}, 1"); P(f"s_add_u32 s{t[2]}, s{t[2]}, s{t[3]}")
    P(f"s_lshl_b32 s{S_OG0}, s{t[2]}, 10")
    P(f"s_mul_i32 s{S_WGB}, s{S_KQ}, {1024*1152}"); P(f"s_mul_i32 s{t[2]}, s{S_N3}, 384"); P(f"s_add_u32 s{S_WGB}, s{S_WGB}, s{t[2]}")
    P(f"s_mul_i32 s{t[2]}, s{S_W}, {8*1152}"); P(f"s_add_u32 s{S_WGB}, s{S_WGB}, s{t[2]}")
    P(f"s_lshl_b32 s{t[0]}, s{S_MT}, 7"); P(f"s_add_u32 s{t[1]}, s{t[0]}, 127")
    P(f"s_mul_i32 s{t[0]}, s{t[0]}, 52429"); P(f"s_lshr_b32 s{t[0]}, s{t[0]}, 23")
    P(f"s_mul_i32 s{t[1]}, s{t[1]}, 52429"); P(f"s_lshr_b32 s{t[1]}, s{t[1]}, 23")
    P(f"s_lshl_b32 s{t[2]}, s{S_P}, 3")
    P(f"s_add_u32 s{t[0]}, s{t[0]}, s{t[2]}"); P(f"s_lshl_b32 s{t[0]}, s{t[0]}, 4")
    P(f"s_add_u32 s{t[1]}, s{t[1]}, s{t[2]}"); P(f"s_lshl_b32 s{t[1]}, s{t[1]}, 4")
    P(f"s_lshl_b32 s{t[2]}, s{S_KQ}, 2"); P(f"s_add_u32 s{t[0]}, s{t[0]}, s{t[2]}"); P(f"s_add_u32 s{t[1]}, s{t[1]}, s{t[2]}")
    VF_ = T[11]
    P(f"v_mov_b32 {VF_}, s{t[0]}"); P(f"v_mov_b32 {T[9]}, s{t[1]}"); P(f"v_cmp_gt_u32 vcc, 4, {L}")
    P(f"v_cndmask_b32 {VF_}, {T[9]}, {VF_}, vcc")
    P(f"v_and_b32 {T[9]}, 3, {L}"); P(f"v_add_u32 {VF_}, {VF_}, {T[9]}"); P(f"v_lshlrev_b32 {VF_}, 7, {VF_}")
    P(f"s_mov_b32 s{S_DONE}, 0")
    P(f"s_mul_i32 s{t[3]}, s{S_N3}, 3"); P(f"s_add_u32 s{t[3]}, s{t[3]}, s{S_MT}")
    if opts.get("g2norot"): P(f"s_mov_b32 s{t[3]}, 0")
    for k in range(8):
        P(f"s_add_u32 s{56+k}, s{t[3]}, {k}"); P(f"s_and_b32 s{56+k}, s{56+k}, 7")
    npick = [0]
    def pick(preloaded):
        k = npick[0]; npick[0] += 1
        P(f"s_cmp_lg_u32 s{S_W}, 0"); P(f"s_cbranch_scc1 L_g2_pk{k}_end")
        P(f"s_mov_b32 s{t[5]}, 0")
        if preloaded:
            P(f"s_waitcnt vmcnt({preloaded})"); P(f"s_branch L_g2_pk{k}_chk")
        P.label(f"L_g2_pk{k}_ld")
        P(f"buffer_load_dword {T[12]}, {VF_}, s[{S_SRDD}:{S_SRDD+3}], 0 offen sc1")
        P("s_waitcnt vmcnt(0)")
        P.label(f"L_g2_pk{k}_chk")
        P(f"v_cmp_eq_u32 vcc, s{S_NONCE}, {T[12]}")
        P(f"s_lshr_b32 s{t[7]}, vcc_lo, 4"); P(f"s_and_b32 s{t[6]}, vcc_lo, s{t[7]}"); P(f"s_and_b32 s{t[6]}, s{t[6]}, 15"); P(f"s_andn2_b32 s{t[6]}, s{t[6]}, s{S_DONE}")
        P(f"s_cmp_lg_u32 s{t[6]}, 0"); P(f"s_cbranch_scc1 L_g2_pk{k}_got")
        P(f"s_sleep {opts.get('slp', 1)}")
        P(f"s_add_u32 s{t[5]}, s{t[5]}, 1"); P(f"s_cmp_lt_u32 s{t[5]}, 400000"); P(f"s_cbranch_scc1 L_g2_pk{k}_ld")
        P(f"s_andn2_b32 s{t[6]}, 15, s{S_DONE}")
        P.label(f"L_g2_pk{k}_got")
        P(f"s_ff1_i32_b32 s{t[6]}, s{t[6]}")
        P(f"v_mov_b32 {T[13]}, s{t[6]}")
        P(f"ds_write_b32 {T[14]}, {T[13]}")
        P("s_waitcnt lgkmcnt(0)")
        P.label(f"L_g2_pk{k}_end")
    def take(dks, dkw):
        P(f"ds_read_b32 {T[13]}, {T[14]}"); P("s_waitcnt lgkmcnt(0)")
        P(f"v_readfirstlane_b32 s{S_SEG}, {T[13]}")
        P(f"s_lshl_b32 s{t[6]}, 1, s{S_SEG}"); P(f"s_or_b32 s{S_DONE}, s{S_DONE}, s{t[6]}")
        P(f"s_mul_i32 s{dks}, s{S_SEG}, {8*81920}"); P(f"s_add_u32 s{dks}, s{dks}, s{S_OG0}")
        P(f"s_mul_i32 s{dkw}, s{S_SEG}, {8*32*1152}")
    pick(False)
    P(f"v_lshlrev_b32 v{V_OG}, 4, {L}")
    for u in range(3):
        P(f"v_add_u32 {T[0]}, {64*u}, {L}")
        P(f"v_mul_u32_u24 {T[1]}, 2731, {T[0]}"); P(f"v_lshrrev_b32 {T[1]}, 16, {T[1]}")
        P(f"v_mul_u32_u24 {T[2]}, 24, {T[1]}"); P(f"v_sub_u32 {T[2]}, {T[0]}, {T[2]}")
        P(f"v_lshrrev_b32 {T[3]}, 1, {T[1]}"); P(f"v_and_b32 {T[3]}, 3, {T[3]}"); P(f"v_lshlrev_b32 {T[3]}, 1, {T[3]}")
        P(f"v_xor_b32 {T[2]}, {T[2]}, {T[3]}"); P(f"v_lshlrev_b32 {T[2]}, 4, {T[2]}")
        P(f"v_mul_u32_u24 {T[1]}, 1152, {T[1]}"); P(f"v_add_u32 {T[1]}, {T[1]}, {T[2]}")
        P(f"v_add_u32 v{V_WG[u]}, s{S_WGB}, {T[1]}")
    P(f"s_lshr_b32 s{t[2]}, s{S_W}, 1"); P(f"s_lshl_b32 s{t[2]}, s{t[2]}, 12"); P(f"v_add_u32 v{V_OA}, s{t[2]}, v{V_OG}")
    P(f"v_lshrrev_b32 {T[0]}, 4, {L}"); P(f"v_and_b32 {T[1]}, 15, {L}"); P(f"v_lshrrev_b32 {T[1]}, 2, {T[1]}")
    P(f"v_lshlrev_b32 {T[2]}, 2, {T[0]}"); P(f"v_add_u32 {T[2]}, {T[2]}, {T[1]}")
    P(f"v_lshrrev_b32 {T[3]}, 1, {T[2]}"); P(f"v_and_b32 {T[3]}, 3, {T[3]}"); P(f"v_lshlrev_b32 {T[3]}, 1, {T[3]}")
    P(f"v_mul_u32_u24 {T[4]}, 384, {T[2]}")
    P(f"v_and_b32 {T[5]}, 3, {L}"); P(f"v_lshrrev_b32 {T[6]}, 1, {T[5]}"); P(f"v_and_b32 {T[5]}, 1, {T[5]}"); P(f"v_lshlrev_b32 {T[5]}, 3, {T[5]}")
    P(f"v_add_u32 {T[4]}, {T[4]}, {T[5]}"); P(f"v_add_u32 {T[4]}, {WBASE}, {T[4]}")
    P(f"s_and_b32 s{t[2]}, s{S_W}, 1"); P(f"s_mul_i32 s{t[2]}, s{t[2]}, 12")
    for nt in range(6):
        P(f"s_add_u32 s{t[3]}, s{t[2]}, {2*nt}"); P(f"v_add_u32 {T[7]}, s{t[3]}, {T[6]}"); P(f"v_xor_b32 {T[7]}, {T[7]}, {T[3]}")
        P(f"v_lshlrev_b32 {T[7]}, 4, {T[7]}"); P(f"v_add_u32 v{V_WA[nt]}, {T[7]}, {T[4]}")
    P(f"s_mov_b32 s{S_SRDO}, s72"); P(f"s_mov_b32 s{S_SRDO+1}, s73"); P(f"s_mov_b32 s{S_SRDO+2}, {2*80*128*1024}"); P(f"s_mov_b32 s{S_SRDO+3}, 0x20000")
    P(f"s_mov_b32 s{S_SRDW}, s64"); P(f"s_mov_b32 s{S_SRDW+1}, s65"); P(f"s_mov_b32 s{S_SRDW+2}, {4096*1152}"); P(f"s_mov_b32 s{S_SRDW+3}, 0x20000")
    P(f"s_add_u32 s{S_SRDX}, s72, {EX_OFF}"); P(f"s_addc_u32 s{S_SRDX+1}, s73, 0"); P(f"s_mov_b32 s{S_SRDX+2}, {60*16*12288}"); P(f"s_mov_b32 s{S_SRDX+3}, 0x20000")
    P(f"s_mov_b32 s{S_SRDOUT}, s68"); P(f"s_mov_b32 s{S_SRDOUT+1}, s69"); P(f"s_mov_b32 s{S_SRDOUT+2}, {1280*2304}"); P(f"s_mov_b32 s{S_SRDOUT+3}, 0x20000")
    P(f"s_lshl_b32 s{S_OL}, s{S_W}, 11"); P(f"s_mul_i32 s{S_WL}, s{S_W}, 3072"); P(f"s_add_u32 s{S_WL}, s{S_WL}, {WBASE}")
    for k in range(96): P(f"v_mov_b32 v{ACC + k}, 0")
    P("s_barrier")
    take(S_KSC, S_KWC)
    stamp()

    def dma_stage(s, nxt):
        buf = s % NBUF; tag = f"S{'n' if nxt else 'c'}{s}"
        ks, kw = (S_KSN, S_KWN) if nxt else (S_KSC, S_KWC)
        def dm(txt):
            def f(): P(txt); vq.push(tag)
            return f
        out = [f"s_mul_i32 s{t[8]}, s{56+s}, 81920", f"s_add_u32 s{t[8]}, s{t[8]}, s{ks}", f"s_add_u32 m0, s{S_OL}, {buf*OST}",
               dm(f"buffer_load_dwordx4 v{V_OG}, s[{S_SRDO}:{S_SRDO+3}], s{t[8]} offen sc1 lds"),
               dm(f"buffer_load_dwordx4 v{V_OG}, s[{S_SRDO}:{S_SRDO+3}], s{t[8]} offen offset:1024 sc1 lds"),
               f"s_mul_i32 s{t[9]}, s{56+s}, {32*1152}", f"s_add_u32 s{t[9]}, s{t[9]}, s{kw}"]
        for u in range(3):
            out.append(f"s_add_u32 m0, s{S_WL}, {buf*WST + u*1024}")
            out.append(dm(f"buffer_load_dwordx4 v{V_WG[u]}, s[{S_SRDW}:{S_SRDW+3}], s{t[9]} offen lds"))
        return out
    def run(l):
        for x in l:
            if callable(x): x()
            elif isinstance(x, list): run(x)
            else: P(x)
    def rd_stage(s):
        buf = s % NBUF; fs = s & 1
        res = [f"ds_read_b128 {vr(BFr(fs, rt))}, v{V_OA} offset:{buf*OST + rt*1024}" for rt in range(4)]
        for nt in range(6):
            for h in range(2):
                res.append(f"ds_read_b64_tr_b16 {vr(AFr(fs, nt) + 2*h, 2)}, v{V_WA[nt]} offset:{buf*WST + h*16*384}")
        return [res[0], res[4], res[5]] + res[1:4] + res[6:]
    def segment(last):
        for s in range(8):
            fs = s & 1
            mf = [f"v_mfma_f32_16x16x32_bf16 {vr(A_(rt, nt))}, {vr(AFr(fs, nt))}, {vr(BFr(fs, rt))}, {vr(A_(rt, nt))}" for nt in range(6) for rt in range(4)]
            for m in mf[:2]: P(m)
            if s < 7: vq.wait(P, f"Sc{s+1}")
            elif not last: vq.wait(P, "Sn0")
            if not (last and s == 7): P("s_barrier")
            dm = []
            if s + 3 < 8: dm = dma_stage(s + 3, False)
            elif not last:
                if s == 5: take(S_KSN, S_KWN)
                dm = dma_stage(s + 3 - 8, True)
            if s == 2 and not last:
                def fl():
                    P(f"buffer_load_dword {T[12]}, {VF_}, s[{S_SRDD}:{S_SRDD+3}], 0 offen sc1"); vq.push("F")
                dm = dm + [fl]
            rd = rd_stage(s + 1) if s < 7 else ([] if last else rd_stage(0))
            fill = []; di = ri = 0
            while di < len(dm) or ri < len(rd):
                if ri < len(rd): fill.append(rd[ri]); ri += 1
                if di < len(dm): fill.append(dm[di]); di += 1
            interleave(P, mf[2:], fill)
            if s == 4 and not last:
                P.autolgkm = False
                P("s_waitcnt lgkmcnt(0)")
                nf = len(vq.q) - 1 - vq.q.index("F") if "F" in vq.q else 63
                pick(nf if nf > 0 else 63)
                P.autolgkm = True
    P.autolgkm = True
    for i in range(3): run(dma_stage(i, False))
    vq.wait(P, "Sc0"); P("s_barrier"); run(rd_stage(0))
    P(f"s_mov_b32 s{t[10]}, 0")
    P("s_waitcnt lgkmcnt(0)")
    q0 = list(vq.q)
    P.label("L_g2_seg")
    segment(False)
    P("s_waitcnt lgkmcnt(0)")
    vq.q = [x.replace("Sn", "Sc") for x in vq.q if x != "F"]
    assert vq.q == q0, (vq.q, q0)
    P(f"s_mov_b32 s{S_KSC}, s{S_KSN}"); P(f"s_mov_b32 s{S_KWC}, s{S_KWN}")
    P(f"s_add_u32 s{t[10]}, s{t[10]}, 1"); P(f"s_cmp_lt_u32 s{t[10]}, 3"); P("s_cbranch_scc1 L_g2_seg")
    segment(True)
    P("s_waitcnt lgkmcnt(0)")
    P.autolgkm = False
    stamp()
    PK = 128
    P(f"s_mul_i32 s{t[0]}, s{S_P}, 30"); P(f"s_add_u32 s{t[0]}, s{t[0]}, s{S_TK}")
    P(f"s_mul_i32 s{t[2]}, s{S_W}, 3072")
    P(f"v_lshlrev_b32 {T[0]}, 4, {L}")
    for j in range(4):
        lab = f"L_g2_skip{j}"
        P(f"s_cmp_eq_u32 s{S_KQ}, {j}"); P(f"s_cbranch_scc1 {lab}")
        for nt in range(6):
            a = A_(j, nt); d = PK + j * 12 + nt * 2
            P(f"v_cvt_pk_bf16_f32 v{d}, v{a}, v{a+1}"); P(f"v_cvt_pk_bf16_f32 v{d+1}, v{a+2}, v{a+3}")
        P(f"s_lshl_b32 s{t[3]}, s{t[0]}, 2"); P(f"s_add_u32 s{t[3]}, s{t[3]}, {j}"); P(f"s_lshl_b32 s{t[3]}, s{t[3]}, 2"); P(f"s_add_u32 s{t[3]}, s{t[3]}, s{S_KQ}")
        P(f"s_mul_i32 s{t[3]}, s{t[3]}, 12288"); P(f"s_add_u32 s{t[3]}, s{t[3]}, s{t[2]}")
        for u in range(3):
            P(f"buffer_store_dwordx4 {vr(PK + j*12 + 4*u)}, {T[0]}, s[{S_SRDX}:{S_SRDX+3}], s{t[3]} offen offset:{u*1024} sc1")
        P.label(lab)
    OWN = 208
    for j in range(4):
        lab = f"L_g2_mv{j}"
        P(f"s_cmp_lg_u32 s{S_KQ}, {j}"); P(f"s_cbranch_scc1 {lab}")
        for nt in range(6):
            for r in range(4): P(f"v_mov_b32 v{OWN + nt*4 + r}, v{A_(j, nt) + r}")
        P.label(lab)
    P("s_waitcnt vmcnt(0)"); P("s_barrier")
    P(f"s_cmp_lg_u32 s{S_W}, 0"); P("s_cbranch_scc1 L_g2_xw")
    P(f"s_lshl_b32 s{t[4]}, s{t[0]}, 2"); P(f"s_add_u32 s{t[4]}, s{t[4]}, 256")
    P(f"v_and_b32 {T[3]}, 3, {L}"); P(f"v_add_u32 {T[3]}, s{t[4]}, {T[3]}"); P(f"v_lshlrev_b32 {T[3]}, 7, {T[3]}")
    P(f"s_add_u32 s{t[4]}, s{t[4]}, s{S_KQ}"); P(f"s_lshl_b32 s{t[4]}, s{t[4]}, 7")
    P(f"v_mov_b32 {T[1]}, s{t[4]}"); P(f"v_mov_b32 {T[2]}, s{S_NONCE}")
    P(f"v_cmp_eq_u32 vcc, 0, {L}"); P("s_and_saveexec_b64 s[74:75], vcc")
    P(f"buffer_store_dword {T[2]}, {T[1]}, s[{S_SRDD}:{S_SRDD+3}], 0 offen sc1")
    P("s_mov_b64 exec, s[74:75]")
    P(f"s_mov_b32 s{t[5]}, 0")
    P.label("L_g2_xpoll")
    P(f"buffer_load_dword {T[4]}, {T[3]}, s[{S_SRDD}:{S_SRDD+3}], 0 offen sc1")
    P("s_waitcnt vmcnt(0)")
    P(f"v_cmp_ne_u32 vcc, s{S_NONCE}, {T[4]}")
    P("s_cbranch_vccz L_g2_xw")
    P(f"s_sleep {opts.get('slp', 1)}")
    P(f"s_add_u32 s{t[5]}, s{t[5]}, 1"); P(f"s_cmp_lt_u32 s{t[5]}, 400000"); P("s_cbranch_scc1 L_g2_xpoll")
    P.label("L_g2_xw")
    P("s_barrier")
    stamp()
    R0 = 128
    for u in range(1, 4):
        P(f"s_add_u32 s{t[4]}, s{S_KQ}, {u}"); P(f"s_and_b32 s{t[4]}, s{t[4]}, 3")
        P(f"s_lshl_b32 s{t[3]}, s{t[0]}, 2"); P(f"s_add_u32 s{t[3]}, s{t[3]}, s{S_KQ}"); P(f"s_lshl_b32 s{t[3]}, s{t[3]}, 2"); P(f"s_add_u32 s{t[3]}, s{t[3]}, s{t[4]}")
        P(f"s_mul_i32 s{t[3]}, s{t[3]}, 12288"); P(f"s_add_u32 s{t[3]}, s{t[3]}, s{t[2]}")
        for c in range(3):
            P(f"buffer_load_dwordx4 {vr(R0 + (u-1)*12 + c*4)}, {T[0]}, s[{S_SRDX}:{S_SRDX+3}], s{t[3]} offen offset:{c*1024} sc1")
    P(f"s_lshl_b32 s{t[3]}, s{S_MT}, 3"); P(f"s_lshr_b32 s{t[4]}, s{S_W}, 1"); P(f"s_lshl_b32 s{t[4]}, s{t[4]}, 2"); P(f"s_add_u32 s{t[3]}, s{t[3]}, s{t[4]}")
    P(f"s_add_u32 s{t[3]}, s{t[3]}, s{S_KQ}"); P(f"s_mul_i32 s{t[3]}, s{t[3]}, {16*2304}")
    P(f"s_mul_i32 s{t[4]}, s{S_P}, 1152"); P(f"s_add_u32 s{t[3]}, s{t[3]}, s{t[4]}")
    P(f"s_mul_i32 s{t[4]}, s{S_N3}, 384"); P(f"s_add_u32 s{t[3]}, s{t[3]}, s{t[4]}")
    P(f"s_and_b32 s{t[4]}, s{S_W}, 1"); P(f"s_mul_i32 s{t[4]}, s{t[4]}, 192"); P(f"s_add_u32 s{t[3]}, s{t[3]}, s{t[4]}")
    P(f"v_and_b32 {T[1]}, 15, {L}"); P(f"v_mul_u32_u24 {T[1]}, 2304, {T[1]}"); P(f"v_lshrrev_b32 {T[2]}, 4, {L}"); P(f"v_lshlrev_b32 {T[2]}, 4, {T[2]}")
    P(f"v_add_u32 {T[1]}, {T[1]}, {T[2]}")
    P(f"s_mov_b32 s{t[5]}, 0xffff0000")
    for u in range(3):
        P(f"s_waitcnt vmcnt({3*(2-u)})")
        for k in range(12):
            src = R0 + u*12 + k
            d = OWN + (k // 2) * 4 + (k & 1) * 2
            P(f"v_lshlrev_b32 {T[3]}, 16, v{src}"); P(f"v_and_b32 {T[4]}, s{t[5]}, v{src}")
            P(f"v_add_f32 v{d}, v{d}, {T[3]}"); P(f"v_add_f32 v{d+1}, v{d+1}, {T[4]}")
    for u in range(3):
        A = OWN + (2*u) * 4; B = OWN + (2*u + 1) * 4
        P(f"v_cvt_pk_bf16_f32 v{A}, v{A}, v{A+1}"); P(f"v_cvt_pk_bf16_f32 v{A+1}, v{A+2}, v{A+3}")
        P(f"v_cvt_pk_bf16_f32 v{B}, v{B}, v{B+1}"); P(f"v_cvt_pk_bf16_f32 v{B+1}, v{B+2}, v{B+3}")
    for u in range(3):
        A = OWN + (2*u) * 4; B = OWN + (2*u + 1) * 4
        P(f"v_permlane32_swap_b32 v{A}, v{B}"); P(f"v_permlane32_swap_b32 v{A+1}, v{B+1}")
    for u in range(3):
        A = OWN + (2*u) * 4; B = OWN + (2*u + 1) * 4
        P(f"v_permlane16_swap_b32 v{A}, v{B}"); P(f"v_permlane16_swap_b32 v{A+1}, v{B+1}")
    for u in range(3):
        A = OWN + (2*u) * 4; B = OWN + (2*u + 1) * 4
        P(f"v_mov_b32 v{A+2}, v{B}"); P(f"v_mov_b32 v{A+3}, v{B+1}")
    for u in range(3):
        A = OWN + (2*u) * 4
        P(f"buffer_store_dwordx4 {vr(A)}, {T[1]}, s[{S_SRDOUT}:{S_SRDOUT+3}], s{t[3]} offen offset:{u*64}")
    if stamps:
        P("s_waitcnt vmcnt(0)")
        stamp()
        P("s_waitcnt lgkmcnt(0)")
        for i in range(8): P(f"v_mov_b32 v{4+i}, s{80+2*min(i, nst[0]-1)}")
        P(f"s_lshl_b32 s{t[0]}, s2, 2"); P(f"s_add_u32 s{t[0]}, s{t[0]}, s{S_W}"); P(f"s_lshl_b32 s{t[0]}, s{t[0]}, 5")
        P(f"s_add_u32 s76, s72, 0x4100000"); P("s_addc_u32 s77, s73, 0"); P("s_mov_b32 s78, 0x100000"); P("s_mov_b32 s79, 0x20000")
        P(f"v_mov_b32 v12, s{t[0]}"); P(f"v_cmp_eq_u32 vcc, 0, {L}"); P("s_and_saveexec_b64 s[74:75], vcc")
        P("buffer_store_dwordx4 v[4:7], v12, s[76:79], 0 offen")
        P("buffer_store_dwordx4 v[8:11], v12, s[76:79], 0 offen offset:16")
    P.label("L_g2_done")
```

```python
from asmlib import *

WREG = 40960
SLOT_K = [0, 16384]
SLOT_V = [8192, 24576]
STG = 16384
CSCALE = 0.08838834764831845 * 1.4426950408889634
BIAS = 7.0

import struct
def f2u(x): return struct.unpack("<I", struct.pack("<f", x))[0]

V_L = 0
V_XA = 1
V_WA = list(range(2, 10))
V_XG = 10
V_WG = [11, 12]
V_KA = list(range(13, 17))
V_KG = list(range(17, 21))
V_VG = [21, 22]
V_T = list(range(23, 32))
V_WG4 = [224, 225, 226, 227]
V_XG5 = [228, 229, 230, 231, 232]
V_XA2 = [1, 233]
KF = 32
S0 = 64
P0 = 104
NM = 124
LL = 144
VF = 164
ONES = 196
ET = 200
ACC = 64
def S(kt, qt): return S0 + (qt * 2 + kt) * 4
def vr(b, n=4): return f"v[{b}:{b+n-1}]"
def ar(b, n=4): return f"a[{b}:{b+n-1}]"
def Oa(dt, qt): return (dt * 5 + qt) * 4
def Qa(qt, s): return 160 + (qt * 4 + s) * 4
def XF(st, qt): return st * 52 + qt * 4
def WF(st, dt): return st * 52 + 20 + dt * 4

S_SRDX, S_SRDW, S_SRDK, S_SRDV, S_SRDO = 4, 8, 12, 16, 20
S_W, S_P, S_B, S_H = 24, 25, 26, 27
S_WB = 28
S_KOFF = 29
S_VOFF = 30
S_XG = [31, 32, 33]
S_XL = [34, 35, 36]
S_WGB = 37
S_WL = 38
S_KX = 39
S_KW = 40
S_T = list(range(41, 56))
S_CNT = 56
S_RET = 58
S_OB = 60
S_C = 61
S_MASK = 62
S_RHO = 63

class VQ:
    def __init__(self): self.q = []
    def push(self, tag): self.q.append(tag)
    def wait(self, P, tag):
        if tag not in self.q: return None
        idx = max(i for i, t in enumerate(self.q) if t == tag)
        n = len(self.q) - 1 - idx
        assert n <= 63, n
        P(f"s_waitcnt vmcnt({n})")
        self.q = self.q[idx + 1:]
        return n

def gen_k1(P, nt=" nt", name="attn_kernel", stamps=False, opts={}):
    vq = VQ()
    P.raw(f".globl {name}\n.p2align 8\n.type {name},@function\n{name}:")
    P("s_cmp_ge_u32 s2, 256"); P("s_cbranch_scc1 L_k1_done")
    t = S_T
    P(f"s_and_b32 s{t[0]}, s2, 7")
    P(f"s_lshr_b32 s{t[1]}, s2, 3")
    P(f"s_and_b32 s{S_P}, s{t[1]}, 1")
    P(f"s_lshr_b32 s{t[1]}, s{t[1]}, 1")
    P(f"s_mul_i32 s{t[4]}, s{S_P}, 40")
    P(f"s_add_u32 s{t[5]}, s0, s{t[4]}"); P(f"s_addc_u32 s{t[6]}, s1, 0")
    assert t[5] % 2 == 0
    P(f"s_load_dwordx8 s[64:71], s[{t[5]}:{t[6]}], 0")
    P(f"s_load_dwordx2 s[72:73], s[0:1], 96")
    nst = opts.setdefault("_nst", [0])
    def stamp(grp="main"):
        if stamps and (grp == opts.get("stgrp", "main") or (grp == "all3" and opts.get("stgrp") == "all")) and nst[0] < 8:
            P(f"s_memrealtime s[{80+2*nst[0]}:{81+2*nst[0]}]"); nst[0] += 1
            if grp == "clk":
                P(f"s_memtime s[{80+2*nst[0]}:{81+2*nst[0]}]"); nst[0] += 1
    if opts.get("stgrp", "main") not in ("k2", "none"): stamp(opts.get("stgrp", "main"))
    P(f"v_lshrrev_b32 v1, 6, v0"); P(f"v_and_b32 v{V_L}, 63, v0")
    P(f"v_readfirstlane_b32 s{S_W}, v1")
    P(f"s_and_b32 s{t[2]}, s{t[1]}, 3")
    P(f"s_lshr_b32 s{t[3]}, s{t[1]}, 2")
    P(f"s_add_u32 s{t[7]}, s{t[2]}, s{t[3]}"); P(f"s_and_b32 s{S_RHO}, s{t[7]}, 3")
    P(f"s_and_b32 s{t[8]}, s{t[0]}, 3"); P(f"s_lshl_b32 s{t[8]}, s{t[8]}, 2"); P(f"s_add_u32 s{t[2]}, s{t[2]}, s{t[8]}")
    P(f"s_lshr_b32 s{t[8]}, s{t[0]}, 2"); P(f"s_lshl_b32 s{t[8]}, s{t[8]}, 2"); P(f"s_add_u32 s{t[3]}, s{t[3]}, s{t[8]}")
    if opts.get("norot"): P(f"s_mov_b32 s{S_RHO}, 0")
    if opts.get("rotmode") == "xcd":
        k = opts.get("rotk", "x")
        if k == "x": P(f"s_and_b32 s{S_RHO}, s2, 7")
        elif k == "coarse":
            P(f"s_mul_i32 s{S_RHO}, s{S_RHO}, 9"); P(f"s_lshr_b32 s{S_RHO}, s{S_RHO}, 2")
        elif k == "xp":
            P(f"s_and_b32 s{S_RHO}, s2, 7"); P(f"s_mul_i32 s{t[14]}, s{S_P}, 4"); P(f"s_add_u32 s{S_RHO}, s{S_RHO}, s{t[14]}"); P(f"s_cmp_ge_u32 s{S_RHO}, 9"); P(f"s_cselect_b32 s{t[14]}, 9, 0"); P(f"s_sub_u32 s{S_RHO}, s{S_RHO}, s{t[14]}")
        elif k == "half":
            P(f"s_and_b32 s{S_RHO}, s{S_RHO}, 1"); P(f"s_mul_i32 s{S_RHO}, s{S_RHO}, 4"); P(f"s_and_b32 s{t[14]}, s2, 3"); P(f"s_add_u32 s{S_RHO}, s{S_RHO}, s{t[14]}")
    P(f"s_lshr_b32 s{t[8]}, s{S_W}, 1"); P(f"s_lshl_b32 s{S_B}, s{t[3]}, 1"); P(f"s_add_u32 s{S_B}, s{S_B}, s{t[8]}")
    P(f"s_and_b32 s{t[9]}, s{S_W}, 1"); P(f"s_lshl_b32 s{S_H}, s{t[2]}, 1"); P(f"s_add_u32 s{S_H}, s{S_H}, s{t[9]}")
    P(f"s_mul_i32 s{S_WB}, s{S_W}, {WREG}")
    P(f"s_cmp_eq_u32 s{S_P}, 0")
    P(f"s_cselect_b32 s{t[10]}, s{t[2]}, s{S_H}")
    P(f"s_add_u32 s{t[11]}, s{S_P}, 4"); P(f"s_lshl_b32 s{t[11]}, s{S_B}, s{t[11]}")
    P(f"s_add_u32 s{t[10]}, s{t[10]}, s{t[11]}"); P(f"s_lshl_b32 s{S_KOFF}, s{t[10]}, 17")
    P(f"s_mov_b32 s{S_VOFF}, s{S_KOFF}")
    P(f"s_lshl_b32 s{t[12]}, s{t[3]}, 1"); P(f"s_add_u32 s{t[12]}, s{t[12]}, s{t[8]}")
    P(f"s_mul_i32 s{S_XG[0]}, s{t[12]}, {80*1152}"); P(f"s_mul_i32 s{t[13]}, s{t[9]}, {40*1152}"); P(f"s_add_u32 s{S_XG[0]}, s{S_XG[0]}, s{t[13]}")
    P(f"s_add_u32 s{t[11]}, s{t[8]}, 2"); P(f"s_mul_i32 s{t[11]}, s{t[11]}, {WREG}"); P(f"s_mul_i32 s{t[13]}, s{t[9]}, 5120")
    P(f"s_add_u32 s{S_XL[0]}, s{t[11]}, s{t[13]}"); P(f"s_add_u32 s{S_XL[0]}, s{S_XL[0]}, {STG}")
    P(f"s_lshl_b32 s{S_WGB}, s{t[8]}, 17"); P(f"s_lshl_b32 s{t[10]}, s{S_H}, 8"); P(f"s_add_u32 s{S_WGB}, s{S_WGB}, s{t[10]}")
    P(f"s_mul_i32 s{S_WL}, s{t[9]}, {WREG}"); P(f"s_lshl_b32 s{t[10]}, s{t[8]}, 12"); P(f"s_add_u32 s{S_WL}, s{S_WL}, s{t[10]}")
    P(f"s_add_u32 s{S_WL}, s{S_WL}, {STG}")
    P(f"s_lshl_b32 s{S_OB}, s{S_P}, 7"); P(f"s_lshl_b32 s{t[10]}, s{S_H}, 2"); P(f"s_add_u32 s{S_OB}, s{S_OB}, s{t[10]}")
    P(f"s_mul_i32 s{S_OB}, s{S_OB}, 80"); P(f"s_mul_i32 s{t[10]}, s{S_B}, 5"); P(f"s_add_u32 s{S_OB}, s{S_OB}, s{t[10]}")
    P(f"s_lshl_b32 s{S_OB}, s{S_OB}, 10")
    P(f"s_mov_b32 s{S_C}, {f2u(CSCALE):#x}"); P(f"s_mov_b32 s{S_MASK}, 0x40004000")
    L = f"v{V_L}"; T = [f"v{x}" for x in V_T]
    P(f"v_lshrrev_b32 {T[0]}, 3, {L}")
    P(f"v_lshrrev_b32 {T[1]}, 4, {L}")
    P(f"v_and_b32 {T[3]}, 7, {L}"); P(f"v_xor_b32 {T[3]}, {T[3]}, {T[1]}"); P(f"v_lshlrev_b32 {T[3]}, 4, {T[3]}")
    P(f"v_mul_u32_u24 v{V_XG}, 1152, {T[0]}"); P(f"v_add_u32 v{V_XG}, v{V_XG}, {T[3]}")
    P(f"v_and_b32 {T[4]}, 15, {L}")
    P(f"v_lshrrev_b32 {T[5]}, 2, {T[4]}")
    P(f"v_lshrrev_b32 {T[2]}, 1, {T[4]}"); P(f"v_xor_b32 {T[2]}, {T[2]}, {T[1]}"); P(f"v_lshlrev_b32 {T[2]}, 4, {T[2]}")
    P(f"v_lshlrev_b32 v{V_XA2[0]}, 7, {T[4]}"); P(f"v_add_u32 v{V_XA2[0]}, v{V_XA2[0]}, {T[2]}")
    P(f"s_add_u32 s{t[10]}, s{t[8]}, 2"); P(f"s_mul_i32 s{t[10]}, s{t[10]}, {WREG}"); P(f"s_add_u32 s{t[10]}, s{t[10]}, {STG}")
    P(f"v_add_u32 v{V_XA2[0]}, s{t[10]}, v{V_XA2[0]}"); P(f"v_xor_b32 v{V_XA2[1]}, 64, v{V_XA2[0]}")
    P(f"v_lshlrev_b32 {T[2]}, 1, {T[1]}"); P(f"v_xor_b32 {T[2]}, {T[2]}, {T[4]}"); P(f"v_lshlrev_b32 {T[2]}, 4, {T[2]}")
    P(f"v_lshlrev_b32 v{V_WG[0]}, 13, {T[1]}"); P(f"v_add_u32 v{V_WG[0]}, v{V_WG[0]}, {T[2]}")
    P(f"v_xor_b32 v{V_WG[1]}, 0x80, v{V_WG[0]}")
    P(f"v_and_b32 {T[6]}, 3, {L}"); P(f"v_lshlrev_b32 {T[6]}, 3, {T[6]}")
    P(f"v_lshlrev_b32 {T[2]}, 3, {T[1]}"); P(f"v_add_u32 {T[2]}, {T[2]}, {T[5]}"); P(f"v_lshlrev_b32 {T[2]}, 8, {T[2]}")
    P(f"v_and_b32 {T[3]}, 1, {T[1]}"); P(f"v_lshlrev_b32 {T[3]}, 2, {T[3]}"); P(f"v_or_b32 {T[3]}, {T[3]}, {T[5]}"); P(f"v_lshlrev_b32 {T[7]}, 5, {T[3]}")
    P(f"v_add_u32 {T[2]}, {T[2]}, {T[7]}"); P(f"v_add_u32 {T[2]}, {T[2]}, {T[6]}")
    P(f"s_mul_i32 s{t[10]}, s{t[9]}, {WREG}"); P(f"s_add_u32 s{t[10]}, s{t[10]}, {STG}")
    P(f"v_add_u32 v{V_WA[0]}, s{t[10]}, {T[2]}")
    for dt in range(1, 8): P(f"v_xor_b32 v{V_WA[dt]}, {dt*32}, v{V_WA[0]}")
    P(f"v_xor_b32 {T[2]}, {T[4]}, {T[1]}"); P(f"v_lshlrev_b32 {T[2]}, 4, {T[2]}")
    P(f"v_lshlrev_b32 {T[3]}, 8, {T[1]}"); P(f"v_add_u32 v{V_KG[0]}, {T[3]}, {T[2]}")
    for v in range(1, 4): P(f"v_xor_b32 v{V_KG[v]}, {64*v}, v{V_KG[0]}")
    P(f"v_lshlrev_b32 {T[7]}, 8, {T[4]}"); P(f"v_add_u32 {T[7]}, {T[7]}, {T[2]}"); P(f"v_add_u32 v{V_KA[0]}, s{S_WB}, {T[7]}")
    for s in range(1, 4): P(f"v_xor_b32 v{V_KA[s]}, {64*s}, v{V_KA[0]}")
    P(f"v_lshlrev_b32 {T[2]}, 1, {T[1]}"); P(f"v_xor_b32 {T[2]}, {T[2]}, {T[4]}"); P(f"v_lshlrev_b32 {T[2]}, 4, {T[2]}")
    P(f"v_add_u32 v{V_VG[0]}, {T[3]}, {T[2]}"); P(f"v_xor_b32 v{V_VG[1]}, 0x80, v{V_VG[0]}")
    P(f"v_lshlrev_b32 {T[2]}, 2, {T[1]}"); P(f"v_add_u32 {T[2]}, {T[2]}, {T[5]}"); P(f"v_and_b32 {T[3]}, 7, {T[2]}")
    P(f"v_lshlrev_b32 {T[2]}, 8, {T[2]}"); P(f"v_lshlrev_b32 {T[3]}, 5, {T[3]}"); P(f"v_add_u32 {T[2]}, {T[2]}, {T[3]}")
    P(f"v_add_u32 {T[2]}, {T[2]}, {T[6]}"); P(f"v_add_u32 {T[8]}, s{S_WB}, {T[2]}")
    for u in range(4):
        P(f"s_add_u32 s{t[10]}, s{S_WGB}, {u*32768}"); P(f"v_add_u32 v{V_WG4[u]}, s{t[10]}, v{V_WG[u>>1]}")
    for u in range(5):
        P(f"s_add_u32 s{t[10]}, s{t[9]}, {u}"); P(f"s_and_b32 s{t[10]}, s{t[10]}, 1"); P(f"s_lshl_b32 s{t[10]}, s{t[10]}, 6")
        P(f"v_xor_b32 v{V_XG5[u]}, s{t[10]}, v{V_XG}")
        P(f"s_add_u32 s{t[10]}, s{S_XG[0]}, {u*8*1152}"); P(f"v_add_u32 v{V_XG5[u]}, s{t[10]}, v{V_XG5[u]}")
    stamp("pro")
    P("s_waitcnt lgkmcnt(0)")
    stamp("pro")
    P(f"s_mov_b32 s{S_SRDX}, s64"); P(f"s_mov_b32 s{S_SRDX+1}, s65"); P(f"s_mov_b32 s{S_SRDX+2}, {16*80*1152}"); P(f"s_mov_b32 s{S_SRDX+3}, 0x20000")
    P(f"s_mov_b32 s{S_SRDW}, s70"); P(f"s_mov_b32 s{S_SRDW+1}, s71"); P(f"s_mov_b32 s{S_SRDW+2}, {576*8192}"); P(f"s_mov_b32 s{S_SRDW+3}, 0x20000")
    P(f"s_add_u32 s{t[10]}, s{S_P}, 25"); P(f"s_lshl_b32 s{t[10]}, 1, s{t[10]}")
    P(f"s_mov_b32 s{S_SRDK}, s66"); P(f"s_mov_b32 s{S_SRDK+1}, s67"); P(f"s_mov_b32 s{S_SRDK+2}, s{t[10]}"); P(f"s_mov_b32 s{S_SRDK+3}, 0x20000")
    P(f"s_mov_b32 s{S_SRDV}, s68"); P(f"s_mov_b32 s{S_SRDV+1}, s69"); P(f"s_mov_b32 s{S_SRDV+2}, s{t[10]}"); P(f"s_mov_b32 s{S_SRDV+3}, 0x20000")
    P(f"s_mov_b32 s{S_SRDO}, s72"); P(f"s_mov_b32 s{S_SRDO+1}, s73"); P(f"s_mov_b32 s{S_SRDO+2}, {2*80*128*1024}"); P(f"s_mov_b32 s{S_SRDO+3}, 0x20000")

    def dcalc(tau, dst, sh):
        if opts.get("rotmode", "fine") == "xcd":
            return [[f"s_add_u32 s{dst}, s{S_RHO}, {tau}", f"s_cmp_ge_u32 s{dst}, 9", f"s_cselect_b32 s{t[14]}, 9, 0", f"s_sub_u32 s{dst}, s{dst}, s{t[14]}"], f"s_lshl_b32 s{dst}, s{dst}, {sh}"]
        if tau == 8: return [f"s_mov_b32 s{dst}, {8 << sh}"]
        m, r = tau >> 2, tau & 3
        return [[f"s_add_u32 s{dst}, s{S_RHO}, {r}", f"s_and_b32 s{dst}, s{dst}, 3", f"s_add_u32 s{dst}, s{dst}, {4*m}", f"s_lshl_b32 s{dst}, s{dst}, {sh}"]]
    def dma_w(st_idx):
        buf = st_idx % 3
        out = []; tag = f"W{st_idx}"
        def dm(txt):
            def f(): P(txt); vq.push(tag)
            return f
        if st_idx % 2 == 0: out += dcalc(st_idx >> 1, S_KW, 19)
        else: out.append(f"s_add_u32 s{S_KW}, s{S_KW}, 0x40000")
        for u in range(4):
            out.append(f"s_add_u32 m0, s{S_WL}, {buf*8192 + u*1024}")
            out.append(dm(f"buffer_load_dwordx4 v{V_WG4[u]}, s[{S_SRDW}:{S_SRDW+3}], s{S_KW} offen{opts.get('wfl','').replace('_',' ')} lds"))
        return out
    def dma_x(D):
        bx = (D + 1) & 1
        out = []; tag = f"X{D}"
        def dm(txt):
            def f(): P(txt); vq.push(tag)
            return f
        out += dcalc(D, S_KX, 7)
        for u in range(5):
            out.append(f"s_add_u32 m0, s{S_XL[0]}, {bx*10240 + u*1024}")
            out.append(dm(f"buffer_load_dwordx4 v{V_XG5[u]}, s[{S_SRDX}:{S_SRDX+3}], s{S_KX} offen{opts.get('xfl','').replace('_',' ')} lds"))
        return out
    def dma_kv(which, blk, slot):
        out = []
        srd = S_SRDK if which == "K" else S_SRDV
        off = S_KOFF if which == "K" else S_VOFF
        tag = f"{which}{blk}"
        def dm(txt):
            def f(): P(txt); vq.push(tag)
            return f
        for i in range(8):
            if i % 4 == 0:
                if i == 4: out.append(f"s_add_u32 s{off}, s{off}, 4096")
                out.append(f"s_add_u32 m0, s{S_WB}, {slot + (i>>2)*4096}")
            vg = V_KG[i & 3] if which == "K" else V_VG[i & 1]
            o = f" offset:{(i&3)*1024}" if i & 3 else ""
            out.append(dm(f"buffer_load_dwordx4 v{vg}, s[{srd}:{srd+3}], s{off} offen{o}{nt} lds"))
        out.append(f"s_add_u32 s{off}, s{off}, 4096")
        return out
    def run(l):
        for x in l:
            if callable(x): x()
            elif isinstance(x, list): run(x)
            else: P(x)
    def rd_stage(st_idx):
        buf = st_idx % 3; fs = st_idx & 1; D = st_idx >> 1; bx = (D + 1) & 1; hf = st_idx & 1
        out = []
        for qt in range(5):
            out.append(f"ds_read_b128 {ar(XF(fs, qt))}, v{V_XA2[hf]} offset:{bx*10240 + qt*2048}")
        for dt in range(8):
            out.append(f"ds_read_b64_tr_b16 {ar(WF(fs, dt), 2)}, v{V_WA[dt]} offset:{buf*8192}")
            out.append(f"ds_read_b64_tr_b16 {ar(WF(fs, dt)+2, 2)}, v{V_WA[dt]} offset:{buf*8192 + 1024}")
        return [out[0], out[5], out[6]] + out[1:5] + out[7:]

    if opts.get("g2"):
        P("s_cmp_lg_u32 s2, 0"); P("s_cbranch_scc1 L_k1_nononce"); P(f"s_cmp_lg_u32 s{S_W}, 0"); P("s_cbranch_scc1 L_k1_nononce")
        P("s_load_dwordx2 s[74:75], s[0:1], 88"); P("s_memrealtime s[76:77]"); P("s_waitcnt lgkmcnt(0)")
        P("s_or_b32 s76, s76, 1"); P("v_mov_b32 v234, s76"); P("v_mov_b32 v235, 0")
        P("s_mov_b32 s76, s74"); P("s_mov_b32 s77, s75"); P("s_mov_b32 s78, 256"); P("s_mov_b32 s79, 0x20000")
        P(f"v_cmp_eq_u32 vcc, 0, {L}"); P("s_and_saveexec_b64 s[74:75], vcc")
        P("buffer_store_dword v234, v235, s[76:79], 0 offen sc1")
        P("s_waitcnt vmcnt(0)")
        P("s_mov_b64 exec, s[74:75]")
        P.label("L_k1_nononce")
    P.c("phase 1 prologue")
    run(dma_x(0)); run(dma_w(0)); stamp("pro"); run(dma_w(1)); run(dma_x(1)); stamp("pro")
    kstep = int(opts.get("k0step", 5)); vstep = int(opts.get("v0step", 8))
    stamp("p1")
    vq.wait(P, "W0"); stamp("pro"); P("s_barrier")
    stamp("p1"); stamp("pro")
    run(rd_stage(0))
    NS = 18
    pf_cache = {}
    for st in range(NS):
        P.c(f"Q-proj step {st}")
        fs = st & 1
        mf = []
        for dt in range(8):
            for qt in range(5):
                a = ACC + (dt * 5 + qt) * 4
                c = "0" if st == 0 else vr(a)
                mf.append(f"v_mfma_f32_16x16x32_bf16 {vr(a)}, {ar(WF(fs, dt))}, {ar(XF(fs, qt))}, {c}")
        P("s_waitcnt lgkmcnt(0)")
        head = int(opts.get('head', 6))
        for m in mf[:head]: P(m)
        fill = []
        if st + 1 < NS:
            need_tags = [f"W{st+1}"] + ([f"X{(st+1)>>1}"] if (st + 1) % 2 == 0 else [])
            last = max(need_tags, key=lambda tg: max([i for i, x in enumerate(vq.q) if x == tg], default=-1))
            if not opts.get("nowait1"): vq.wait(P, last)
        if not opts.get("nobar1"): P("s_barrier")
        dm = []
        if st == 0: dm += dma_w(2)
        if st + 3 < NS and not opts.get("nodmaW"): dm += dma_w(st + 3)
        if st % 2 == 1 and (st + 3) // 2 < 9 and not opts.get("nodmaX"): dm += dma_x((st + 3) // 2)
        if not opts.get("nokv1"):
            sched = opts.get("pf", "5:K0a,5:K0b,8:V0a,8:V0b")
            for ev in sched.split(","):
                es, what = ev.split(":")
                if int(es) == st:
                    which, half = what[0], what[2]
                    key = what[:2]
                    if key not in pf_cache: pf_cache[key] = dma_kv(which, 0, SLOT_K[0] if which == "K" else SLOT_V[0])
                    atoms = pf_cache[key]
                    dm += atoms[:5] if half == "a" else atoms[5:]
            if st == 15: dm += dma_kv("K", 1, SLOT_K[1])
            if st == 17: dm += dma_kv("V", 1, SLOT_V[1])
        rd = rd_stage(st + 1) if st + 1 < NS else []
        if opts.get("nord1"): rd = []
        fill = []
        nd, nr = len(dm), len(rd)
        di = ri = 0
        rr = int(opts.get("rratio", 2))
        while di < nd or ri < nr:
            for _ in range(rr):
                if ri < nr: fill.append(rd[ri]); ri += 1
            if di < nd: fill.append(dm[di]); di += 1
        interleave(P, mf[head:], fill)
        if st in (0, 1, 2, 8, 17): stamp("p1")
        if st in tuple(int(x) for x in opts.get("p2steps", "8.9.10.11.12.13.14").split(".")): stamp("p2")
        if st in tuple(int(x) for x in opts.get("clksteps", "9.14").split(".")): stamp("clk")
    stamp(); stamp("all3")
    if opts.get("p1only"):
        P("s_waitcnt vmcnt(0)"); P("s_endpgm")
    P.c("Q conversion")
    for dt in range(8): P(f"v_xor_b32 v{V_WA[dt]}, {dt*32}, {T[8]}") if dt else P(f"v_mov_b32 v{V_WA[0]}, {T[8]}")
    for qt in range(5):
        for s in range(4):
            A = ACC + ((2 * s) * 5 + qt) * 4; B = ACC + ((2 * s + 1) * 5 + qt) * 4
            for r in range(4): P(f"v_mul_f32 v{A+r}, s{S_C}, v{A+r}")
            for r in range(4): P(f"v_mul_f32 v{B+r}, s{S_C}, v{B+r}")
            P(f"v_cvt_pk_bf16_f32 v{A}, v{A}, v{A+1}"); P(f"v_cvt_pk_bf16_f32 v{A+1}, v{A+2}, v{A+3}")
            P(f"v_cvt_pk_bf16_f32 v{B}, v{B}, v{B+1}"); P(f"v_cvt_pk_bf16_f32 v{B+1}, v{B+2}, v{B+3}")
    for qt in range(5):
        for s in range(4):
            A = ACC + ((2 * s) * 5 + qt) * 4; B = ACC + ((2 * s + 1) * 5 + qt) * 4
            P(f"v_permlane32_swap_b32 v{A}, v{B}"); P(f"v_permlane32_swap_b32 v{A+1}, v{B+1}")
    for qt in range(5):
        for s in range(4):
            A = ACC + ((2 * s) * 5 + qt) * 4; B = ACC + ((2 * s + 1) * 5 + qt) * 4
            P(f"v_permlane16_swap_b32 v{A}, v{B}"); P(f"v_permlane16_swap_b32 v{A+1}, v{B+1}")
    for qt in range(5):
        for s in range(4):
            A = ACC + ((2 * s) * 5 + qt) * 4; B = ACC + ((2 * s + 1) * 5 + qt) * 4
            q = Qa(qt, s)
            P(f"v_accvgpr_write_b32 a{q}, v{A}"); P(f"v_accvgpr_write_b32 a{q+1}, v{A+1}")
            P(f"v_accvgpr_write_b32 a{q+2}, v{B}"); P(f"v_accvgpr_write_b32 a{q+3}, v{B+1}")
    for r in range(4): P(f"v_mov_b32 v{ONES+r}, 0x3f803f80")

    def rd_K(slot):
        return [f"ds_read_b128 {vr(KF + (kt*4+s)*4)}, v{V_KA[s]} offset:{slot + kt*4096}" for kt in range(2) for s in range(4)]
    def rd_V(slot):
        out = []
        for dt in range(8):
            out.append(f"ds_read_b64_tr_b16 {vr(VF + dt*4, 2)}, v{V_WA[dt]} offset:{slot}")
            out.append(f"ds_read_b64_tr_b16 {vr(VF + dt*4 + 2, 2)}, v{V_WA[dt]} offset:{slot + 4096}")
        return out
    def qk_mfmas(qt, first):
        out = []
        for kt in range(2):
            for s in range(4):
                d = S(kt, qt)
                c = (("0" if first else vr(NM + qt * 4)) if s == 0 else vr(d))
                out.append(f"v_mfma_f32_16x16x32_bf16 {vr(d)}, {vr(KF + (kt*4+s)*4)}, {ar(Qa(qt, s))}, {c}")
        return out
    def softmax_ops(qt, orreg, first_or):
        e = ET + (qt & 1) * 8
        out = []
        for kt in range(2):
            for r in range(4): out.append(f"v_exp_f32 v{e + kt*4 + r}, v{S(kt, qt) + r}")
            out.append(f"v_cvt_pk_bf16_f32 v{P0 + qt*4 + kt*2}, v{e + kt*4}, v{e + kt*4 + 1}")
            out.append(f"v_cvt_pk_bf16_f32 v{P0 + qt*4 + kt*2 + 1}, v{e + kt*4 + 2}, v{e + kt*4 + 3}")
        o = [out[0], out[1], out[2], out[3], out[6], out[4], out[7], out[5], out[8], out[9], out[10], out[11]]
        p = P0 + qt * 4
        if first_or:
            o.append(f"v_or3_b32 {orreg}, v{p}, v{p+1}, v{p+2}"); o.append(f"v_or_b32 {orreg}, {orreg}, v{p+3}")
        else:
            o.append(f"v_or3_b32 {orreg}, {orreg}, v{p}, v{p+1}"); o.append(f"v_or3_b32 {orreg}, {orreg}, v{p+2}, v{p+3}")
        return o
    def colmax(qt, dst, tmp):
        a = S(0, qt); b = S(1, qt)
        P(f"v_max3_f32 {dst}, v{a}, v{a+1}, v{a+2}"); P(f"v_max3_f32 {tmp}, v{a+3}, v{b}, v{b+1}")
        P(f"v_max3_f32 {dst}, {dst}, v{b+2}, v{b+3}"); P(f"v_max_f32 {dst}, {dst}, {tmp}")
        P(f"v_mov_b32 {tmp}, {dst}"); P(f"v_permlane32_swap_b32 {dst}, {tmp}"); P(f"v_max_f32 {dst}, {dst}, {tmp}")
        P(f"v_mov_b32 {tmp}, {dst}"); P(f"v_permlane16_swap_b32 {dst}, {tmp}"); P(f"v_max_f32 {dst}, {dst}, {tmp}")
    ORR = T[0]
    def merge(a, b):
        out = []; i = j = 0
        while i < len(a) or j < len(b):
            if i < len(a) and (j >= len(b) or i * max(len(b), 1) <= j * len(a)): out.append(a[i]); i += 1
            else: out.append(b[j]); j += 1
        return out
    def block(i, first=False, issue=True, last=False):
        par = i & 1
        P.c(f"block {i} QK")
        P("s_waitcnt lgkmcnt(0)")
        dmK = dma_kv("K", i + 2, SLOT_K[par]) if issue else []
        rdV = rd_V(SLOT_V[par])
        waitV = lambda: vq.wait(P, f"V{i}")
        for qt in range(5):
            fill = []
            if not first and qt > 0: fill += softmax_ops(qt - 1, ORR, qt == 1)
            if qt == 0: fill += dmK[:6]
            if qt == 1: fill = merge(fill, dmK[6:])
            if qt == 3: fill = [waitV] + merge(fill, rdV[:8])
            if qt == 4: fill = merge(fill, rdV[8:])
            interleave(P, qk_mfmas(qt, first), fill)
        if first:
            P.c("first block: establish the running max")
            for qt in range(5):
                colmax(qt, T[1], T[2])
                P(f"v_add_f32 {T[1]}, 0x{f2u(BIAS):x}, {T[1]}")
                for r in range(4): P(f"v_sub_f32 v{NM + qt*4 + r}, 0, {T[1]}")
                for kt in range(2):
                    for r in range(4): P(f"v_sub_f32 v{S(kt, qt) + r}, v{S(kt, qt) + r}, {T[1]}")
                run(softmax_ops(qt, ORR, qt == 0))
        else:
            run(softmax_ops(4, ORR, False))
            P(f"v_and_b32 {ORR}, s{S_MASK}, {ORR}")
            P(f"v_cmp_ne_u32 vcc, 0, {ORR}")
            lab = f"L_ok_{i}"
            P(f"s_cbranch_vccz {lab}")
            P(f"s_call_b64 s[{S_RET}:{S_RET+1}], L_rescale")
            P.label(lab)
        P.c(f"block {i} PV")
        P("s_waitcnt lgkmcnt(0)")
        dmV = dma_kv("V", i + 2, SLOT_V[par]) if issue else []
        mf = []
        for qt in range(5):
            for dt in range(8):
                o = Oa(dt, qt)
                c = "0" if first else ar(o)
                mf.append(f"v_mfma_f32_16x16x32_bf16 {ar(o)}, {vr(VF + dt*4)}, {vr(P0 + qt*4)}, {c}")
            c = "0" if first else vr(LL + qt * 4)
            mf.append(f"v_mfma_f32_16x16x32_bf16 {vr(LL + qt*4)}, {vr(ONES)}, {vr(P0 + qt*4)}, {c}")
        fill = list(dmV)
        tail = []
        if not last:
            tail = [lambda: vq.wait(P, f"K{i+1}")] + rd_K(SLOT_K[(i + 1) & 1])
        interleave(P, mf[:27], fill)
        interleave(P, mf[27:], tail)

    stamp()
    vq.wait(P, "K0"); run(rd_K(SLOT_K[0]))
    block(0, first=True)
    stamp()
    block(1)
    stamp()
    P(f"s_mov_b32 s{S_CNT}, 0")
    qsave = [x for x in vq.q]
    P.label("L_attn_loop")
    block(2); block(3)
    def shape(q, base): return [(x[0], int(x[1:]) - base) for x in q]
    assert shape(qsave, 2) == shape(vq.q, 4), (qsave, vq.q)
    P(f"s_add_u32 s{S_CNT}, s{S_CNT}, 1"); P(f"s_cmp_lt_u32 s{S_CNT}, 6"); P("s_cbranch_scc1 L_attn_loop")
    vq.q = [f"{x[0]}{int(x[1:]) - 4 + 14}" for x in vq.q]
    if opts.get("g2"):
        P("s_load_dwordx2 s[74:75], s[0:1], 88")
        P(f"v_mov_b32 v235, 0")
        P("s_waitcnt lgkmcnt(0)")
        P("s_mov_b32 s76, s74"); P("s_mov_b32 s77, s75"); P("s_mov_b32 s78, 256"); P("s_mov_b32 s79, 0x20000")
        P("buffer_load_dword v234, v235, s[76:79], 0 offen sc1"); vq.push("TK")
    block(14, issue=False); block(15, issue=False, last=True)
    stamp(); stamp("clk"); stamp("all3")
    P.c("epilogue")
    for qt in range(5): P(f"v_rcp_f32 v{NM + qt}, v{LL + qt*4}")
    P(f"v_lshlrev_b32 {T[0]}, 4, {L}")
    n = 0
    for qt in range(5):
        for s in range(4):
            e = S0 + (n % 4) * 8; n += 1
            P(f"s_add_u32 s{t[0]}, s{S_OB}, {s*81920 + qt*1024}")
            for r in range(4): P(f"v_accvgpr_read_b32 v{e+r}, a{Oa(2*s, qt)+r}")
            for r in range(4): P(f"v_accvgpr_read_b32 v{e+4+r}, a{Oa(2*s+1, qt)+r}")
            for r in range(8): P(f"v_mul_f32 v{e+r}, v{e+r}, v{NM+qt}")
            P(f"v_cvt_pk_bf16_f32 v{e}, v{e}, v{e+1}"); P(f"v_cvt_pk_bf16_f32 v{e+1}, v{e+2}, v{e+3}")
            P(f"v_cvt_pk_bf16_f32 v{e+2}, v{e+4}, v{e+5}"); P(f"v_cvt_pk_bf16_f32 v{e+3}, v{e+6}, v{e+7}")
            P(f"buffer_store_dwordx4 {vr(e)}, {T[0]}, s[{S_SRDO}:{S_SRDO+3}], s{t[0]} offen{' sc1' if (opts.get('merge') or opts.get('g2')) else opts.get('ost', '').replace('_', ' ')}")
    if stamps and nst[0] > 0 and opts.get("stgrp") != "all":
        P("s_waitcnt vmcnt(0)")
        stamp()
        P("s_waitcnt lgkmcnt(0)")
        for i in range(8): P(f"v_mov_b32 v{4+i}, s{80+2*min(i, nst[0]-1)}")
        P(f"s_lshl_b32 s{t[0]}, s2, 2"); P(f"s_add_u32 s{t[0]}, s{t[0]}, s{S_W}"); P(f"s_lshl_b32 s{t[0]}, s{t[0]}, 5")
        P(f"s_add_u32 s76, s72, 0x4000000"); P("s_addc_u32 s77, s73, 0"); P("s_mov_b32 s78, 0x100000"); P("s_mov_b32 s79, 0x20000")
        P(f"v_mov_b32 v12, s{t[0]}"); P(f"v_cmp_eq_u32 vcc, 0, {L}"); P("s_and_saveexec_b64 s[74:75], vcc")
        P("buffer_store_dwordx4 v[4:7], v12, s[76:79], 0 offen")
        P("buffer_store_dwordx4 v[8:11], v12, s[76:79], 0 offen offset:16")
        P("s_mov_b64 exec, s[74:75]")
    if opts.get("g2"):
        import g2
        g2.gen_g2(P, opts, {"P": S_P, "B": S_B, "H": S_H})
    elif opts.get("merge"):
        import k2
        P(f"s_lshl_b32 s{t[0]}, s{S_P}, 5"); P(f"s_lshr_b32 s{t[1]}, s{S_B}, 1"); P(f"s_lshl_b32 s{t[1]}, s{t[1]}, 2"); P(f"s_add_u32 s{t[0]}, s{t[0]}, s{t[1]}")
        P(f"s_lshr_b32 s{t[1]}, s{S_H}, 3"); P(f"s_add_u32 s{t[0]}, s{t[0]}, s{t[1]}"); P(f"s_lshl_b32 s{t[0]}, s{t[0]}, 2")
        P("s_load_dwordx2 s[70:71], s[0:1], 88")
        P("s_waitcnt vmcnt(0) lgkmcnt(0)"); P("s_barrier")
        P(f"s_cmp_lg_u32 s{S_W}, 0"); P("s_cbranch_scc1 L_k1_sig")
        P("s_mov_b32 s20, s70"); P("s_mov_b32 s21, s71"); P("s_mov_b32 s22, 256"); P("s_mov_b32 s23, 0x20000")
        P(f"v_mov_b32 {T[1]}, s{t[0]}"); P(f"v_mov_b32 {T[2]}, 1")
        P(f"v_cmp_eq_u32 vcc, 0, {L}"); P("s_and_saveexec_b64 s[74:75], vcc")
        P(f"buffer_atomic_add {T[2]}, {T[1]}, s[20:23], 0 offen")
        P("s_mov_b64 exec, s[74:75]")
        P.label("L_k1_sig")
        k2.gen_k2(P, opts, merged=True)
    P.label("L_k1_done")
    P("s_endpgm")
    P.label("L_rescale")
    P("s_nop 7"); P("s_nop 7")
    for qt in range(5):
        colmax(qt, T[1], T[2])
        P(f"v_add_f32 {T[1]}, 0x{f2u(BIAS):x}, {T[1]}"); P(f"v_max_f32 {T[1]}, 0, {T[1]}")
        P(f"v_sub_f32 {T[2]}, 0, {T[1]}"); P(f"v_exp_f32 {T[2]}, {T[2]}")
        for r in range(4): P(f"v_sub_f32 v{NM + qt*4 + r}, v{NM + qt*4 + r}, {T[1]}")
        for kt in range(2):
            for r in range(4): P(f"v_sub_f32 v{S(kt, qt) + r}, v{S(kt, qt) + r}, {T[1]}")
        for r in range(4): P(f"v_mul_f32 v{LL + qt*4 + r}, v{LL + qt*4 + r}, {T[2]}")
        for dt in range(8):
            for r in range(4): P(f"v_accvgpr_read_b32 v{ET + r}, a{Oa(dt, qt) + r}")
            for r in range(4): P(f"v_mul_f32 v{ET + r}, v{ET + r}, {T[2]}")
            for r in range(4): P(f"v_accvgpr_write_b32 a{Oa(dt, qt) + r}, v{ET + r}")
        run(softmax_ops(qt, ORR, True))
    P("s_nop 7")
    P(f"s_setpc_b64 s[{S_RET}:{S_RET+1}]")

def desc(name, vgpr, accum, sgpr=100):
    return f""".section .rodata,"a"
.p2align 6
.amdhsa_kernel {name}
  .amdhsa_next_free_vgpr {vgpr}
  .amdhsa_next_free_sgpr {sgpr}
  .amdhsa_accum_offset {accum}
  .amdhsa_group_segment_fixed_size 0
  .amdhsa_kernarg_size 104
  .amdhsa_user_sgpr_count 2
  .amdhsa_user_sgpr_kernarg_segment_ptr 1
  .amdhsa_system_sgpr_workgroup_id_x 1
.end_amdhsa_kernel
"""
```

```python
from asmlib import *
from k1 import vr, ar, VQ, f2u

NBUF = 4
OST = 8192
WST = 12288
WBASE = NBUF * OST
LDS = NBUF * (OST + WST)
NVGPR = 256
EX_OFF = 0x2000000

ACC = 32
BF = 128
AF = 160
V_OA = 1
V_WA = [2, 3, 4, 5, 6, 7]
V_OG = 8
V_WG = [9, 10, 11]
V_T = list(range(12, 32))
def A_(rt, nt): return ACC + (rt * 6 + nt) * 4
def BFr(s, rt): return BF + s * 16 + rt * 4
def AFr(s, nt): return AF + s * 24 + nt * 4

S_SRDO, S_SRDW, S_SRDX, S_SRDOUT, S_SRDD = 4, 8, 12, 16, 20
S_W, S_P, S_KQ, S_MT, S_N3 = 24, 25, 26, 27, 28
S_OG = [29, 30]
S_KS = 31
S_KW = 32
S_WGB = 33
S_RHO = 34
S_T = list(range(40, 56))

def gen_k2(P, opts={}, merged=False):
    name = "oproj_kernel"
    stamps = opts.get("stamps", False) and opts.get("stgrp") in ("none", "k2", "all")
    vq = VQ()
    t = S_T
    if not merged:
        P.raw(f".globl {name}\n.p2align 8\n.type {name},@function\n{name}:")
    P("s_cmp_ge_u32 s2, 240"); P("s_cbranch_scc1 L_k2_done")
    nst = opts.setdefault("_nst", [0]) if opts.get("stgrp") == "all" else [0]
    allm = opts.get("stgrp") == "all"
    def stamp(sk=False):
        if stamps and nst[0] < 8 and not (allm and sk):
            P(f"s_memrealtime s[{80+2*nst[0]}:{81+2*nst[0]}]"); nst[0] += 1
    stamp()
    P(f"s_and_b32 s{t[0]}, s2, 7"); P(f"s_lshr_b32 s{S_P}, s{t[0]}, 2"); P(f"s_and_b32 s{S_KQ}, s{t[0]}, 3")
    P(f"s_lshr_b32 s{t[1]}, s2, 3")
    P(f"s_mul_hi_u32 s{S_MT}, s{t[1]}, 0x55555556"); P(f"s_mul_i32 s{t[2]}, s{S_MT}, 3"); P(f"s_sub_u32 s{S_N3}, s{t[1]}, s{t[2]}")
    P(f"s_mul_i32 s{t[4]}, s{S_P}, 40"); P(f"s_add_u32 s{t[6]}, s0, s{t[4]}"); P(f"s_addc_u32 s{t[7]}, s1, 0")
    assert t[6] % 2 == 0
    P(f"s_load_dwordx2 s[64:65], s[{t[6]}:{t[7]}], 32")
    P(f"s_load_dwordx4 s[68:71], s[0:1], 80")
    P(f"s_load_dwordx2 s[72:73], s[0:1], 96")
    if not merged:
        P("v_lshrrev_b32 v1, 6, v0"); P("v_and_b32 v0, 63, v0"); P(f"v_readfirstlane_b32 s{S_W}, v1")
    T = [f"v{x}" for x in V_T]
    P(f"s_lshl_b32 s{t[2]}, s{S_P}, 7"); P(f"s_lshl_b32 s{t[3]}, s{S_KQ}, 5"); P(f"s_add_u32 s{t[2]}, s{t[2]}, s{t[3]}"); P(f"s_mul_i32 s{t[2]}, s{t[2]}, 80")
    P(f"s_lshl_b32 s{t[3]}, s{S_MT}, 3"); P(f"s_add_u32 s{t[2]}, s{t[2]}, s{t[3]}")
    P(f"s_lshl_b32 s{t[3]}, s{S_W}, 1"); P(f"s_add_u32 s{t[2]}, s{t[2]}, s{t[3]}")
    P(f"s_lshl_b32 s{S_OG[0]}, s{t[2]}, 10")
    pol = opts.get("k2rot", "lat")
    if pol == "lat":
        P(f"s_mul_i32 s{t[2]}, s{S_N3}, 171"); P(f"s_lshr_b32 s{t[2]}, s{t[2]}, 4")
        P(f"s_mul_i32 s{t[3]}, s{S_MT}, 205"); P(f"s_lshr_b32 s{t[3]}, s{t[3]}, 6")
        P(f"s_add_u32 s{t[2]}, s{t[2]}, s{t[3]}"); P(f"s_and_b32 s{S_RHO}, s{t[2]}, 31")
    elif pol == "t":
        P(f"s_mov_b32 s{S_RHO}, s{t[1]}")
    elif pol == "n3":
        P(f"s_mul_i32 s{t[2]}, s{S_N3}, 171"); P(f"s_lshr_b32 s{t[2]}, s{t[2]}, 4"); P(f"s_add_u32 s{t[2]}, s{t[2]}, s{S_MT}"); P(f"s_and_b32 s{S_RHO}, s{t[2]}, 31")
    P(f"s_mul_i32 s{S_KS}, s{S_RHO}, 81920"); P(f"s_add_u32 s{S_KS}, s{S_KS}, s{S_OG[0]}"); P(f"s_mul_i32 s{S_KW}, s{S_RHO}, {32*1152}")
    P(f"s_add_u32 s{S_OG[1]}, s{S_OG[0]}, {32*81920}")
    P(f"s_mul_i32 s{S_WGB}, s{S_KQ}, {1024*1152}"); P(f"s_mul_i32 s{t[2]}, s{S_N3}, 384"); P(f"s_add_u32 s{S_WGB}, s{S_WGB}, s{t[2]}")
    P(f"s_mul_i32 s{t[2]}, s{S_W}, {8*1152}"); P(f"s_add_u32 s{S_WGB}, s{S_WGB}, s{t[2]}")
    L = "v0"
    P(f"v_lshlrev_b32 v{V_OG}, 4, {L}")
    for u in range(3):
        P(f"v_add_u32 {T[0]}, {64*u}, {L}")
        P(f"v_mul_u32_u24 {T[1]}, 2731, {T[0]}"); P(f"v_lshrrev_b32 {T[1]}, 16, {T[1]}")
        P(f"v_mul_u32_u24 {T[2]}, 24, {T[1]}"); P(f"v_sub_u32 {T[2]}, {T[0]}, {T[2]}")
        P(f"v_lshrrev_b32 {T[3]}, 1, {T[1]}"); P(f"v_and_b32 {T[3]}, 3, {T[3]}"); P(f"v_lshlrev_b32 {T[3]}, 1, {T[3]}")
        P(f"v_xor_b32 {T[2]}, {T[2]}, {T[3]}"); P(f"v_lshlrev_b32 {T[2]}, 4, {T[2]}")
        P(f"v_mul_u32_u24 {T[1]}, 1152, {T[1]}"); P(f"v_add_u32 {T[1]}, {T[1]}, {T[2]}")
        P(f"v_add_u32 v{V_WG[u]}, s{S_WGB}, {T[1]}")
    P(f"s_lshr_b32 s{t[2]}, s{S_W}, 1"); P(f"s_lshl_b32 s{t[2]}, s{t[2]}, 12"); P(f"v_add_u32 v{V_OA}, s{t[2]}, v{V_OG}")
    P(f"v_lshrrev_b32 {T[0]}, 4, {L}"); P(f"v_and_b32 {T[1]}, 15, {L}"); P(f"v_lshrrev_b32 {T[1]}, 2, {T[1]}")
    P(f"v_lshlrev_b32 {T[2]}, 2, {T[0]}"); P(f"v_add_u32 {T[2]}, {T[2]}, {T[1]}")
    P(f"v_lshrrev_b32 {T[3]}, 1, {T[2]}"); P(f"v_and_b32 {T[3]}, 3, {T[3]}"); P(f"v_lshlrev_b32 {T[3]}, 1, {T[3]}")
    P(f"v_mul_u32_u24 {T[4]}, 384, {T[2]}")
    P(f"v_and_b32 {T[5]}, 3, {L}"); P(f"v_lshrrev_b32 {T[6]}, 1, {T[5]}"); P(f"v_and_b32 {T[5]}, 1, {T[5]}"); P(f"v_lshlrev_b32 {T[5]}, 3, {T[5]}")
    P(f"v_add_u32 {T[4]}, {T[4]}, {T[5]}"); P(f"v_add_u32 {T[4]}, {WBASE}, {T[4]}")
    P(f"s_and_b32 s{t[2]}, s{S_W}, 1"); P(f"s_mul_i32 s{t[2]}, s{t[2]}, 12")
    for nt in range(6):
        P(f"s_add_u32 s{t[3]}, s{t[2]}, {2*nt}"); P(f"v_add_u32 {T[7]}, s{t[3]}, {T[6]}"); P(f"v_xor_b32 {T[7]}, {T[7]}, {T[3]}")
        P(f"v_lshlrev_b32 {T[7]}, 4, {T[7]}"); P(f"v_add_u32 v{V_WA[nt]}, {T[7]}, {T[4]}")
    P("s_waitcnt lgkmcnt(0)")
    P(f"s_mov_b32 s{S_SRDO}, s72"); P(f"s_mov_b32 s{S_SRDO+1}, s73"); P(f"s_mov_b32 s{S_SRDO+2}, {2*80*128*1024}"); P(f"s_mov_b32 s{S_SRDO+3}, 0x20000")
    P(f"s_mov_b32 s{S_SRDW}, s64"); P(f"s_mov_b32 s{S_SRDW+1}, s65"); P(f"s_mov_b32 s{S_SRDW+2}, {4096*1152}"); P(f"s_mov_b32 s{S_SRDW+3}, 0x20000")
    P(f"s_add_u32 s{S_SRDX}, s72, {EX_OFF}"); P(f"s_addc_u32 s{S_SRDX+1}, s73, 0"); P(f"s_mov_b32 s{S_SRDX+2}, {4*1280*2304}"); P(f"s_mov_b32 s{S_SRDX+3}, 0x20000")
    P(f"s_mov_b32 s{S_SRDOUT}, s68"); P(f"s_mov_b32 s{S_SRDOUT+1}, s69"); P(f"s_mov_b32 s{S_SRDOUT+2}, {1280*2304}"); P(f"s_mov_b32 s{S_SRDOUT+3}, 0x20000")
    P(f"s_mov_b32 s{S_SRDD}, s70"); P(f"s_mov_b32 s{S_SRDD+1}, s71"); P(f"s_mov_b32 s{S_SRDD+2}, 256"); P(f"s_mov_b32 s{S_SRDD+3}, 0x20000")

    osc = " sc1" if merged else opts.get('o2fl','').replace('_',' ')
    def dma_stage(i, part="ow"):
        buf = i % NBUF; tag = f"S{i}"
        def dm(txt):
            def f(): P(txt); vq.push(tag)
            return f
        out = []
        if "o" in part:
            out.append(f"s_add_u32 m0, s{t[12]}, {buf*OST}")
            out.append(dm(f"buffer_load_dwordx4 v{V_OG}, s[{S_SRDO}:{S_SRDO+3}], s{S_KS} offen{osc} lds"))
            out.append(dm(f"buffer_load_dwordx4 v{V_OG}, s[{S_SRDO}:{S_SRDO+3}], s{S_KS} offen offset:1024{osc} lds"))
            out += [f"s_add_u32 s{S_KS}, s{S_KS}, 81920", [f"s_cmp_eq_u32 s{S_KS}, s{S_OG[1]}", f"s_cselect_b32 s{S_KS}, s{S_OG[0]}, s{S_KS}"]]
        if "w" in part:
            for u in range(3):
                out.append(f"s_add_u32 m0, s{t[13]}, {buf*WST + u*1024}")
                out.append(dm(f"buffer_load_dwordx4 v{V_WG[u]}, s[{S_SRDW}:{S_SRDW+3}], s{S_KW} offen{opts.get('w2fl','').replace('_',' ')} lds"))
            out += [f"s_add_u32 s{S_KW}, s{S_KW}, {32*1152}", [f"s_cmp_eq_u32 s{S_KW}, {32*32*1152}", f"s_cselect_b32 s{S_KW}, 0, s{S_KW}"]]
        return out
    def run(l):
        for x in l:
            if callable(x): x()
            elif isinstance(x, list): run(x)
            else: P(x)
    def rd_stage(i):
        buf = i % NBUF; fs = i & 1
        out = []
        for rt in range(4): out.append(f"ds_read_b128 {vr(BFr(fs, rt))}, v{V_OA} offset:{buf*OST + rt*1024}")
        for nt in range(6):
            out.append(("tr", nt, 0)); out.append(("tr", nt, 1))
        res = []
        for o in out:
            if isinstance(o, tuple):
                _, nt, h = o
                off = buf * WST + h * 16 * 384
                res.append(f"ds_read_b64_tr_b16 {vr(AFr(fs, nt) + 2*h, 2)}, v{V_WA[nt]} offset:{off}")
            else: res.append(o)
        return [res[0], res[4], res[5]] + res[1:4] + res[6:]
    P(f"s_lshl_b32 s{t[12]}, s{S_W}, 11")
    P(f"s_mul_i32 s{t[13]}, s{S_W}, 3072"); P(f"s_add_u32 s{t[13]}, s{t[13]}, {WBASE}")
    NK = 32; LA = 3
    P.autolgkm = True
    if merged:
        for i in range(LA): run(dma_stage(i, "w"))
        P(f"s_cmp_lg_u32 s{S_W}, 0"); P("s_cbranch_scc1 L_k2_ready")
        P(f"s_lshl_b32 s{t[0]}, s{S_MT}, 7"); P(f"s_add_u32 s{t[1]}, s{t[0]}, 127")
        P(f"s_mul_i32 s{t[0]}, s{t[0]}, 52429"); P(f"s_lshr_b32 s{t[0]}, s{t[0]}, 23")
        P(f"s_mul_i32 s{t[1]}, s{t[1]}, 52429"); P(f"s_lshr_b32 s{t[1]}, s{t[1]}, 23")
        P(f"s_lshl_b32 s{t[2]}, s{S_P}, 5"); P(f"s_add_u32 s{t[2]}, s{t[2]}, s{S_KQ}")
        P(f"s_lshl_b32 s{t[0]}, s{t[0]}, 2"); P(f"s_add_u32 s{t[0]}, s{t[0]}, s{t[2]}"); P(f"s_lshl_b32 s{t[0]}, s{t[0]}, 2")
        P(f"s_lshl_b32 s{t[1]}, s{t[1]}, 2"); P(f"s_add_u32 s{t[1]}, s{t[1]}, s{t[2]}"); P(f"s_lshl_b32 s{t[1]}, s{t[1]}, 2")
        P(f"v_mov_b32 {T[8]}, s{t[0]}"); P(f"v_mov_b32 {T[9]}, s{t[1]}"); P(f"v_cmp_eq_u32 vcc, 0, {L}")
        P(f"v_cndmask_b32 {T[8]}, {T[9]}, {T[8]}, vcc")
        P(f"s_mov_b32 s{t[3]}, 0")
        P.label("L_k2_poll")
        P(f"buffer_load_dword {T[9]}, {T[8]}, s[{S_SRDD}:{S_SRDD+3}], 0 offen sc1")
        P("s_waitcnt vmcnt(0)")
        P(f"v_and_b32 {T[9]}, 0xff, {T[9]}")
        P(f"v_cmp_gt_u32 vcc, 4, {T[9]}")
        P("s_cbranch_vccz L_k2_ready")
        P("s_sleep 1")
        P(f"s_add_u32 s{t[3]}, s{t[3]}, 1"); P(f"s_cmp_lt_u32 s{t[3]}, 400000"); P("s_cbranch_scc1 L_k2_poll")
        P.label("L_k2_ready")
        P("s_barrier")
        for i in range(LA): run(dma_stage(i, "o"))
    else:
        for i in range(LA): run(dma_stage(i))
    stamp()
    vq.wait(P, "S0"); P("s_barrier"); run(rd_stage(0))
    for i in range(NK):
        fs = i & 1
        mf = []
        for nt in range(6):
            for rt in range(4):
                a = A_(rt, nt); c = "0" if i == 0 else vr(a)
                mf.append(f"v_mfma_f32_16x16x32_bf16 {vr(a)}, {vr(AFr(fs, nt))}, {vr(BFr(fs, rt))}, {c}")
        hd = int(opts.get("k2head", 2))
        for m in mf[:hd]: P(m)
        if i + 1 < NK: vq.wait(P, f"S{i+1}")
        P("s_barrier")
        dm = dma_stage(i + LA) if i + LA < NK else []
        rd = rd_stage(i + 1) if i + 1 < NK else []
        fill = []; di = ri = 0
        while di < len(dm) or ri < len(rd):
            if ri < len(rd): fill.append(rd[ri]); ri += 1
            if di < len(dm): fill.append(dm[di]); di += 1
        interleave(P, mf[hd:], fill)
        if i in (0, 15): stamp(True)
    P("s_waitcnt lgkmcnt(0)")
    P.autolgkm = False
    stamp()
    if not opts.get("xch"):
        P(f"s_lshl_b32 s{t[3]}, s{S_MT}, 3"); P(f"s_lshr_b32 s{t[4]}, s{S_W}, 1"); P(f"s_lshl_b32 s{t[4]}, s{t[4]}, 2"); P(f"s_add_u32 s{t[3]}, s{t[3]}, s{t[4]}")
        P(f"s_mul_i32 s{t[3]}, s{t[3]}, {16*2304}")
        P(f"s_mul_i32 s{t[4]}, s{S_KQ}, {1280*2304}"); P(f"s_add_u32 s{t[3]}, s{t[3]}, s{t[4]}")
        P(f"s_mul_i32 s{t[4]}, s{S_P}, 1152"); P(f"s_add_u32 s{t[3]}, s{t[3]}, s{t[4]}")
        P(f"s_mul_i32 s{t[4]}, s{S_N3}, 384"); P(f"s_add_u32 s{t[3]}, s{t[3]}, s{t[4]}")
        P(f"s_and_b32 s{t[4]}, s{S_W}, 1"); P(f"s_mul_i32 s{t[4]}, s{t[4]}, 192"); P(f"s_add_u32 s{t[3]}, s{t[3]}, s{t[4]}")
        P(f"v_and_b32 {T[1]}, 15, {L}"); P(f"v_mul_u32_u24 {T[1]}, 2304, {T[1]}"); P(f"v_lshrrev_b32 {T[2]}, 4, {L}"); P(f"v_lshlrev_b32 {T[2]}, 4, {T[2]}")
        P(f"v_add_u32 {T[1]}, {T[1]}, {T[2]}")
        for rt in range(4):
            for u in range(3):
                A = A_(rt, 2*u); B = A_(rt, 2*u + 1)
                P(f"v_cvt_pk_bf16_f32 v{A}, v{A}, v{A+1}"); P(f"v_cvt_pk_bf16_f32 v{A+1}, v{A+2}, v{A+3}")
                P(f"v_cvt_pk_bf16_f32 v{B}, v{B}, v{B+1}"); P(f"v_cvt_pk_bf16_f32 v{B+1}, v{B+2}, v{B+3}")
            for u in range(3):
                A = A_(rt, 2*u); B = A_(rt, 2*u + 1)
                P(f"v_permlane32_swap_b32 v{A}, v{B}"); P(f"v_permlane32_swap_b32 v{A+1}, v{B+1}")
            for u in range(3):
                A = A_(rt, 2*u); B = A_(rt, 2*u + 1)
                P(f"v_permlane16_swap_b32 v{A}, v{B}"); P(f"v_permlane16_swap_b32 v{A+1}, v{B+1}")
            for u in range(3):
                A = A_(rt, 2*u); B = A_(rt, 2*u + 1)
                P(f"v_mov_b32 v{A+2}, v{B}"); P(f"v_mov_b32 v{A+3}, v{B+1}")
            for u in range(3):
                A = A_(rt, 2*u)
                P(f"buffer_store_dwordx4 {vr(A)}, {T[1]}, s[{S_SRDX}:{S_SRDX+3}], s{t[3]} offen offset:{u*64}{opts.get('pst', '').replace('_', ' ')}")
            if rt < 3: P(f"s_add_u32 s{t[3]}, s{t[3]}, {16*2304}")

    else:
        PK = 128
        P(f"s_mul_i32 s{t[0]}, s{S_P}, 30"); P(f"s_lshr_b32 s{t[1]}, s2, 3"); P(f"s_add_u32 s{t[0]}, s{t[0]}, s{t[1]}")
        P(f"s_mul_i32 s{t[2]}, s{S_W}, 3072")
        P(f"v_lshlrev_b32 {T[0]}, 4, {L}")
        for j in range(4):
            lab = f"L_k2_skip{j}"
            P(f"s_cmp_eq_u32 s{S_KQ}, {j}"); P(f"s_cbranch_scc1 {lab}")
            for nt in range(6):
                a = A_(j, nt); d = PK + j * 12 + nt * 2
                P(f"v_cvt_pk_bf16_f32 v{d}, v{a}, v{a+1}"); P(f"v_cvt_pk_bf16_f32 v{d+1}, v{a+2}, v{a+3}")
            P(f"s_lshl_b32 s{t[3]}, s{t[0]}, 2"); P(f"s_add_u32 s{t[3]}, s{t[3]}, {j}"); P(f"s_lshl_b32 s{t[3]}, s{t[3]}, 2"); P(f"s_add_u32 s{t[3]}, s{t[3]}, s{S_KQ}")
            P(f"s_mul_i32 s{t[3]}, s{t[3]}, 12288"); P(f"s_add_u32 s{t[3]}, s{t[3]}, s{t[2]}")
            for u in range(3):
                P(f"buffer_store_dwordx4 {vr(PK + j*12 + 4*u)}, {T[0]}, s[{S_SRDX}:{S_SRDX+3}], s{t[3]} offen offset:{u*1024} sc1")
            P.label(lab)
        OWN = 208
        for j in range(4):
            lab = f"L_k2_mv{j}"
            P(f"s_cmp_lg_u32 s{S_KQ}, {j}"); P(f"s_cbranch_scc1 {lab}")
            for nt in range(6):
                for r in range(4): P(f"v_mov_b32 v{OWN + nt*4 + r}, v{A_(j, nt) + r}")
            P.label(lab)
        P("s_waitcnt vmcnt(0)"); P("s_barrier")
        stamp(True)
        P(f"s_cmp_lg_u32 s{S_W}, 0"); P("s_cbranch_scc1 L_k2_xw")
        P(f"s_lshl_b32 s{t[4]}, s{t[0]}, 2"); P(f"v_mov_b32 {T[1]}, s{t[4]}"); P(f"v_mov_b32 {T[2]}, 0x100")
        P(f"v_cmp_eq_u32 vcc, 0, {L}"); P("s_and_saveexec_b64 s[60:61], vcc")
        P(f"buffer_atomic_add {T[2]}, {T[1]}, s[{S_SRDD}:{S_SRDD+3}], 0 offen")
        P("s_mov_b64 exec, s[60:61]")
        P(f"s_mov_b32 s{t[5]}, 0")
        P.label("L_k2_xpoll")
        P(f"buffer_load_dword {T[3]}, {T[1]}, s[{S_SRDD}:{S_SRDD+3}], 0 offen sc1")
        P("s_waitcnt vmcnt(0)")
        P(f"v_readfirstlane_b32 s{t[6]}, {T[3]}")
        P(f"s_bfe_u32 s{t[6]}, s{t[6]}, 0x80008")
        P(f"s_cmp_ge_u32 s{t[6]}, 4"); P("s_cbranch_scc1 L_k2_xw")
        P("s_sleep 1")
        P(f"s_add_u32 s{t[5]}, s{t[5]}, 1"); P(f"s_cmp_lt_u32 s{t[5]}, 400000"); P("s_cbranch_scc1 L_k2_xpoll")
        P.label("L_k2_xw")
        P("s_barrier")
        stamp()
        R0 = 128
        for u in range(1, 4):
            P(f"s_add_u32 s{t[4]}, s{S_KQ}, {u}"); P(f"s_and_b32 s{t[4]}, s{t[4]}, 3")
            P(f"s_lshl_b32 s{t[3]}, s{t[0]}, 2"); P(f"s_add_u32 s{t[3]}, s{t[3]}, s{S_KQ}"); P(f"s_lshl_b32 s{t[3]}, s{t[3]}, 2"); P(f"s_add_u32 s{t[3]}, s{t[3]}, s{t[4]}")
            P(f"s_mul_i32 s{t[3]}, s{t[3]}, 12288"); P(f"s_add_u32 s{t[3]}, s{t[3]}, s{t[2]}")
            for c in range(3):
                P(f"buffer_load_dwordx4 {vr(R0 + (u-1)*12 + c*4)}, {T[0]}, s[{S_SRDX}:{S_SRDX+3}], s{t[3]} offen offset:{c*1024} sc1")
        P(f"s_lshl_b32 s{t[3]}, s{S_MT}, 3"); P(f"s_lshr_b32 s{t[4]}, s{S_W}, 1"); P(f"s_lshl_b32 s{t[4]}, s{t[4]}, 2"); P(f"s_add_u32 s{t[3]}, s{t[3]}, s{t[4]}")
        P(f"s_add_u32 s{t[3]}, s{t[3]}, s{S_KQ}"); P(f"s_mul_i32 s{t[3]}, s{t[3]}, {16*2304}")
        P(f"s_mul_i32 s{t[4]}, s{S_P}, 1152"); P(f"s_add_u32 s{t[3]}, s{t[3]}, s{t[4]}")
        P(f"s_mul_i32 s{t[4]}, s{S_N3}, 384"); P(f"s_add_u32 s{t[3]}, s{t[3]}, s{t[4]}")
        P(f"s_and_b32 s{t[4]}, s{S_W}, 1"); P(f"s_mul_i32 s{t[4]}, s{t[4]}, 192"); P(f"s_add_u32 s{t[3]}, s{t[3]}, s{t[4]}")
        P(f"v_and_b32 {T[1]}, 15, {L}"); P(f"v_mul_u32_u24 {T[1]}, 2304, {T[1]}"); P(f"v_lshrrev_b32 {T[2]}, 4, {L}"); P(f"v_lshlrev_b32 {T[2]}, 4, {T[2]}")
        P(f"v_add_u32 {T[1]}, {T[1]}, {T[2]}")
        P(f"s_mov_b32 s{t[5]}, 0xffff0000")
        for u in range(3):
            P(f"s_waitcnt vmcnt({3*(2-u)})")
            for k in range(12):
                src = R0 + u*12 + k
                d = OWN + (k // 2) * 4 + (k & 1) * 2
                P(f"v_lshlrev_b32 {T[3]}, 16, v{src}"); P(f"v_and_b32 {T[4]}, s{t[5]}, v{src}")
                P(f"v_add_f32 v{d}, v{d}, {T[3]}"); P(f"v_add_f32 v{d+1}, v{d+1}, {T[4]}")
        for u in range(3):
            A = OWN + (2*u) * 4; B = OWN + (2*u + 1) * 4
            P(f"v_cvt_pk_bf16_f32 v{A}, v{A}, v{A+1}"); P(f"v_cvt_pk_bf16_f32 v{A+1}, v{A+2}, v{A+3}")
            P(f"v_cvt_pk_bf16_f32 v{B}, v{B}, v{B+1}"); P(f"v_cvt_pk_bf16_f32 v{B+1}, v{B+2}, v{B+3}")
        for u in range(3):
            A = OWN + (2*u) * 4; B = OWN + (2*u + 1) * 4
            P(f"v_permlane32_swap_b32 v{A}, v{B}"); P(f"v_permlane32_swap_b32 v{A+1}, v{B+1}")
        for u in range(3):
            A = OWN + (2*u) * 4; B = OWN + (2*u + 1) * 4
            P(f"v_permlane16_swap_b32 v{A}, v{B}"); P(f"v_permlane16_swap_b32 v{A+1}, v{B+1}")
        for u in range(3):
            A = OWN + (2*u) * 4; B = OWN + (2*u + 1) * 4
            P(f"v_mov_b32 v{A+2}, v{B}"); P(f"v_mov_b32 v{A+3}, v{B+1}")
        for u in range(3):
            A = OWN + (2*u) * 4
            P(f"buffer_store_dwordx4 {vr(A)}, {T[1]}, s[{S_SRDOUT}:{S_SRDOUT+3}], s{t[3]} offen offset:{u*64}")
    if stamps:
        P("s_waitcnt vmcnt(0)")
        stamp()
        P("s_waitcnt lgkmcnt(0)")
        for i in range(8): P(f"v_mov_b32 v{4+i}, s{80+2*min(i, nst[0]-1)}")
        P(f"s_lshl_b32 s{t[0]}, s2, 2"); P(f"s_add_u32 s{t[0]}, s{t[0]}, s{S_W}"); P(f"s_lshl_b32 s{t[0]}, s{t[0]}, 5")
        P(f"s_add_u32 s76, s72, 0x4100000"); P("s_addc_u32 s77, s73, 0"); P("s_mov_b32 s78, 0x100000"); P("s_mov_b32 s79, 0x20000")
        P(f"v_mov_b32 v12, s{t[0]}"); P(f"v_cmp_eq_u32 vcc, 0, {L}"); P("s_and_saveexec_b64 s[74:75], vcc")
        P("buffer_store_dwordx4 v[4:7], v12, s[76:79], 0 offen")
        P("buffer_store_dwordx4 v[8:11], v12, s[76:79], 0 offen offset:16")
    P.label("L_k2_done")
    P("s_endpgm")

def gen_k3(P, opts={}):
    name = "reduce_kernel"
    P.raw(f".globl {name}\n.p2align 8\n.type {name},@function\n{name}:")
    P("s_cmp_ge_u32 s2, 720"); P("s_cbranch_scc1 L_k3_done")
    P("s_load_dwordx2 s[4:5], s[0:1], 80"); P("s_load_dwordx2 s[6:7], s[0:1], 96")
    P("v_lshlrev_b32 v1, 4, v0"); P("s_lshl_b32 s3, s2, 12")
    P("s_waitcnt lgkmcnt(0)")
    P(f"s_add_u32 s8, s6, {EX_OFF}"); P("s_addc_u32 s9, s7, 0"); P(f"s_mov_b32 s10, {4*1280*2304}"); P("s_mov_b32 s11, 0x20000")
    P("s_mov_b32 s12, s4"); P("s_mov_b32 s13, s5"); P(f"s_mov_b32 s14, {1280*2304}"); P("s_mov_b32 s15, 0x20000")
    for k in range(4):
        if k: P(f"s_add_u32 s16, s3, {k*1280*2304}")
        so = "s3" if k == 0 else "s16"
        P(f"buffer_load_dwordx4 v[{4+4*k}:{7+4*k}], v1, s[8:11], {so} offen{opts.get('k3ld', '').replace('_', ' ')}")
    P("s_mov_b32 s17, 0xffff0000")
    for k in range(4):
        P(f"s_waitcnt vmcnt({3-k})")
        for j in range(4):
            src = 4 + 4*k + j
            if k == 0:
                P(f"v_lshlrev_b32 v{20+j}, 16, v{src}"); P(f"v_and_b32 v{24+j}, s17, v{src}")
            else:
                P(f"v_lshlrev_b32 v28, 16, v{src}"); P(f"v_and_b32 v29, s17, v{src}")
                P(f"v_add_f32 v{20+j}, v{20+j}, v28"); P(f"v_add_f32 v{24+j}, v{24+j}, v29")
    for j in range(4): P(f"v_cvt_pk_bf16_f32 v{4+j}, v{20+j}, v{24+j}")
    P("buffer_store_dwordx4 v[4:7], v1, s[12:15], s3 offen")
    P.label("L_k3_done")
    P("s_endpgm")
```

```python
import sys
from asmlib import *
import k1
HDR = open("concat_heads__gqa_block_cached__mha_block_cached__near_ridge.s.ref").read().split("\n")
hdr = [l for l in HDR if l.startswith(";") and "@launch" not in l and "Override launch" not in l and "grid=ceil" not in l]
def build(opts):
    P = Prog()
    launches = []
    body = []
    launches.append("; @launch kernel=attn_kernel grid=(256,1,1) block=(256,1,1) lds=163840")
    k1.gen_k1(P, nt=opts.get("nt", " nt"), stamps=opts.get("stamps", False), opts=opts)
    descs = k1.desc("attn_kernel", 512, 256)
    if opts.get("k2", True) and not opts.get("g2"):
        import k2
        if not opts.get("merge"):
            launches.append(f"; @launch kernel=oproj_kernel grid=(256,1,1) block=(256,1,1) lds={k2.LDS}")
            k2.gen_k2(P, opts)
            descs += k1.desc("oproj_kernel", k2.NVGPR, k2.NVGPR)
        if not opts.get("xch"):
            launches.append("; @launch kernel=reduce_kernel grid=(720,1,1) block=(256,1,1) lds=0")
            k2.gen_k3(P, opts)
            descs += k1.desc("reduce_kernel", 32, 32, 32)
    errs = P.check_branches()
    for e in errs: print("BRANCH HAZARD:", e, file=sys.stderr)
    txt = "\n".join(hdr[:14]) + "\n" + "\n".join(launches) + "\n" + '.amdgcn_target "amdgcn-amd-amdhsa--gfx950"\n.text\n' + P.text() + descs
    print(f"instructions: {sum(1 for k, v in P.items if k == 'i')}, auto nops: {P.nops}", file=sys.stderr)
    return txt
if __name__ == "__main__":
    out = sys.argv[1]
    opts = {}
    for a in sys.argv[2:]:
        k, v = a.split("=")
        opts[k] = {"1": True, "0": False}.get(v, v)
    open(out, "w").write(build(opts))
```

```python
from asmlib import *
from k1 import vr, ar, VQ, f2u
import k2
from k2 import NBUF, OST, WST, WBASE, EX_OFF, ACC, BF, AF, V_OA, V_WA, V_OG, V_WG, V_T, A_, BFr, AFr

S_SRDO, S_SRDW, S_SRDX, S_SRDOUT, S_SRDD = 4, 8, 12, 16, 20
S_W, S_P, S_KQ, S_MT, S_N3 = 24, 25, 26, 27, 28
S_OG0 = 29
S_KSC, S_KWC, S_KSN, S_KWN = 30, 31, 32, 33
S_WGB = 34
S_DONE = 35
S_TK = 36
S_SEG = 37
S_OL, S_WL = 38, 39
S_NONCE = 66
S_T = list(range(40, 56))
FLAG_OFF = 0x3000000
SEL = 81920 + 64

def gen_g2(P, opts, S1):
    stamps = opts.get("stamps", False) and opts.get("stgrp") in ("k2", "all")
    nst = opts.setdefault("_nst", [0])
    def stamp():
        if stamps and nst[0] < 8:
            P(f"s_memrealtime s[{80+2*nst[0]}:{81+2*nst[0]}]"); nst[0] += 1
    vq = VQ(); t = S_T
    T = [f"v{x}" for x in V_T]; L = "v0"
    P(f"s_lshl_b32 s{t[0]}, s{S1['P']}, 3"); P(f"s_lshr_b32 s{t[1]}, s{S1['B']}, 1"); P(f"s_add_u32 s{t[0]}, s{t[0]}, s{t[1]}"); P(f"s_lshl_b32 s{t[0]}, s{t[0]}, 4")
    P(f"s_lshr_b32 s{t[1]}, s{S1['H']}, 1"); P(f"s_add_u32 s{t[0]}, s{t[0]}, s{t[1]}"); P(f"s_lshl_b32 s{t[0]}, s{t[0]}, 7")
    P("s_load_dwordx4 s[68:71], s[0:1], 80")
    P("s_load_dwordx2 s[72:73], s[0:1], 96")
    P(f"s_and_b32 s{t[2]}, s2, 7"); P(f"s_lshr_b32 s{S_P}, s{t[2]}, 2"); P(f"s_and_b32 s{S_KQ}, s{t[2]}, 3")
    P(f"s_mul_i32 s{t[4]}, s{S_P}, 40"); P(f"s_add_u32 s{t[6]}, s0, s{t[4]}"); P(f"s_addc_u32 s{t[7]}, s1, 0")
    P(f"s_load_dwordx2 s[64:65], s[{t[6]}:{t[7]}], 32")
    P("s_waitcnt vmcnt(0) lgkmcnt(0)")
    P(f"s_mov_b32 s{S_SRDD}, s70"); P(f"s_mov_b32 s{S_SRDD+1}, s71"); P(f"s_mov_b32 s{S_SRDD+2}, 256"); P(f"s_mov_b32 s{S_SRDD+3}, 0x20000")
    P(f"s_mov_b32 s{t[5]}, 0")
    P.label("L_g2_nonce")
    P(f"v_readfirstlane_b32 s{S_NONCE}, v234")
    P(f"s_cmp_lg_u32 s{S_NONCE}, 0"); P("s_cbranch_scc1 L_g2_nonce_ok")
    P(f"v_mov_b32 v235, 0")
    P(f"buffer_load_dword v234, v235, s[{S_SRDD}:{S_SRDD+3}], 0 offen sc1"); P("s_waitcnt vmcnt(0)")
    P(f"s_add_u32 s{t[5]}, s{t[5]}, 1"); P(f"s_cmp_lt_u32 s{t[5]}, 400000"); P("s_cbranch_scc1 L_g2_nonce")
    P.label("L_g2_nonce_ok")
    P("s_barrier")
    stamp()
    P(f"s_add_u32 s{S_SRDD}, s72, {FLAG_OFF}"); P(f"s_addc_u32 s{S_SRDD+1}, s73, 0"); P(f"s_mov_b32 s{S_SRDD+2}, {512*128}"); P(f"s_mov_b32 s{S_SRDD+3}, 0x20000")
    P(f"v_mov_b32 {T[14]}, {SEL + 64}")
    P(f"s_cmp_lg_u32 s{S_W}, 0"); P("s_cbranch_scc1 L_g2_sig")
    P(f"v_mov_b32 {T[1]}, s{t[0]}"); P(f"v_mov_b32 {T[2]}, s{S_NONCE}")
    P(f"v_cmp_eq_u32 vcc, 0, {L}"); P("s_and_saveexec_b64 s[74:75], vcc")
    P(f"buffer_store_dword {T[2]}, {T[1]}, s[{S_SRDD}:{S_SRDD+3}], 0 offen sc1")
    P("s_mov_b64 exec, s[74:75]")
    P.label("L_g2_sig")
    P(f"s_lshr_b32 s{S_TK}, s2, 3")
    P(f"s_cmp_ge_u32 s{S_TK}, 30"); P("s_cbranch_scc1 L_g2_done")
    P(f"s_mul_hi_u32 s{S_MT}, s{S_TK}, 0x55555556"); P(f"s_mul_i32 s{t[2]}, s{S_MT}, 3"); P(f"s_sub_u32 s{S_N3}, s{S_TK}, s{t[2]}")
    P(f"s_lshl_b32 s{t[2]}, s{S_P}, 7"); P(f"s_lshl_b32 s{t[3]}, s{S_KQ}, 5"); P(f"s_add_u32 s{t[2]}, s{t[2]}, s{t[3]}"); P(f"s_mul_i32 s{t[2]}, s{t[2]}, 80")
    P(f"s_lshl_b32 s{t[3]}, s{S_MT}, 3"); P(f"s_add_u32 s{t[2]}, s{t[2]}, s{t[3]}")
    P(f"s_lshl_b32 s{t[3]}, s{S_W}, 1"); P(f"s_add_u32 s{t[2]}, s{t[2]}, s{t[3]}")
    P(f"s_lshl_b32 s{S_OG0}, s{t[2]}, 10")
    P(f"s_mul_i32 s{S_WGB}, s{S_KQ}, {1024*1152}"); P(f"s_mul_i32 s{t[2]}, s{S_N3}, 384"); P(f"s_add_u32 s{S_WGB}, s{S_WGB}, s{t[2]}")
    P(f"s_mul_i32 s{t[2]}, s{S_W}, {8*1152}"); P(f"s_add_u32 s{S_WGB}, s{S_WGB}, s{t[2]}")
    P(f"s_lshl_b32 s{t[0]}, s{S_MT}, 7"); P(f"s_add_u32 s{t[1]}, s{t[0]}, 127")
    P(f"s_mul_i32 s{t[0]}, s{t[0]}, 52429"); P(f"s_lshr_b32 s{t[0]}, s{t[0]}, 23")
    P(f"s_mul_i32 s{t[1]}, s{t[1]}, 52429"); P(f"s_lshr_b32 s{t[1]}, s{t[1]}, 23")
    P(f"s_lshl_b32 s{t[2]}, s{S_P}, 3")
    P(f"s_add_u32 s{t[0]}, s{t[0]}, s{t[2]}"); P(f"s_lshl_b32 s{t[0]}, s{t[0]}, 4")
    P(f"s_add_u32 s{t[1]}, s{t[1]}, s{t[2]}"); P(f"s_lshl_b32 s{t[1]}, s{t[1]}, 4")
    P(f"s_lshl_b32 s{t[2]}, s{S_KQ}, 2"); P(f"s_add_u32 s{t[0]}, s{t[0]}, s{t[2]}"); P(f"s_add_u32 s{t[1]}, s{t[1]}, s{t[2]}")
    VF_ = T[11]
    P(f"v_mov_b32 {VF_}, s{t[0]}"); P(f"v_mov_b32 {T[9]}, s{t[1]}"); P(f"v_cmp_gt_u32 vcc, 4, {L}")
    P(f"v_cndmask_b32 {VF_}, {T[9]}, {VF_}, vcc")
    P(f"v_and_b32 {T[9]}, 3, {L}"); P(f"v_add_u32 {VF_}, {VF_}, {T[9]}"); P(f"v_lshlrev_b32 {VF_}, 7, {VF_}")
    P(f"s_mov_b32 s{S_DONE}, 0")
    P(f"s_mul_i32 s{t[3]}, s{S_N3}, 3"); P(f"s_add_u32 s{t[3]}, s{t[3]}, s{S_MT}")
    if opts.get("g2norot"): P(f"s_mov_b32 s{t[3]}, 0")
    for k in range(8):
        P(f"s_add_u32 s{56+k}, s{t[3]}, {k if not opts.get('g2same') else 0}"); P(f"s_and_b32 s{56+k}, s{56+k}, 7")
    npick = [0]
    def pick(preloaded):
        k = npick[0]; npick[0] += 1
        P(f"s_cmp_lg_u32 s{S_W}, 0"); P(f"s_cbranch_scc1 L_g2_pk{k}_end")
        P(f"s_mov_b32 s{t[5]}, 0")
        if preloaded:
            P(f"s_waitcnt vmcnt({preloaded})"); P(f"s_branch L_g2_pk{k}_chk")
        P.label(f"L_g2_pk{k}_ld")
        P(f"buffer_load_dword {T[12]}, {VF_}, s[{S_SRDD}:{S_SRDD+3}], 0 offen sc1")
        P("s_waitcnt vmcnt(0)")
        P.label(f"L_g2_pk{k}_chk")
        P(f"v_cmp_eq_u32 vcc, s{S_NONCE}, {T[12]}")
        P(f"s_lshr_b32 s{t[7]}, vcc_lo, 4"); P(f"s_and_b32 s{t[6]}, vcc_lo, s{t[7]}"); P(f"s_and_b32 s{t[6]}, s{t[6]}, 15"); P(f"s_andn2_b32 s{t[6]}, s{t[6]}, s{S_DONE}")
        P(f"s_cmp_lg_u32 s{t[6]}, 0"); P(f"s_cbranch_scc1 L_g2_pk{k}_got")
        P(f"s_sleep {opts.get('slp', 1)}")
        P(f"s_add_u32 s{t[5]}, s{t[5]}, 1"); P(f"s_cmp_lt_u32 s{t[5]}, 400000"); P(f"s_cbranch_scc1 L_g2_pk{k}_ld")
        P(f"s_andn2_b32 s{t[6]}, 15, s{S_DONE}")
        P.label(f"L_g2_pk{k}_got")
        P(f"s_ff1_i32_b32 s{t[6]}, s{t[6]}")
        P(f"v_mov_b32 {T[13]}, s{t[6]}")
        P(f"ds_write_b32 {T[14]}, {T[13]}")
        P("s_waitcnt lgkmcnt(0)")
        P.label(f"L_g2_pk{k}_end")
    def take(dks, dkw):
        P(f"ds_read_b32 {T[13]}, {T[14]}"); P("s_waitcnt lgkmcnt(0)")
        P(f"v_readfirstlane_b32 s{S_SEG}, {T[13]}")
        P(f"s_lshl_b32 s{t[6]}, 1, s{S_SEG}"); P(f"s_or_b32 s{S_DONE}, s{S_DONE}, s{t[6]}")
        P(f"s_mul_i32 s{dks}, s{S_SEG}, {8*81920}"); P(f"s_add_u32 s{dks}, s{dks}, s{S_OG0}")
        P(f"s_mul_i32 s{dkw}, s{S_SEG}, {8*32*1152}")
    pick(False)
    P(f"v_lshlrev_b32 v{V_OG}, 4, {L}")
    for u in range(3):
        P(f"v_add_u32 {T[0]}, {64*u}, {L}")
        P(f"v_mul_u32_u24 {T[1]}, 2731, {T[0]}"); P(f"v_lshrrev_b32 {T[1]}, 16, {T[1]}")
        P(f"v_mul_u32_u24 {T[2]}, 24, {T[1]}"); P(f"v_sub_u32 {T[2]}, {T[0]}, {T[2]}")
        P(f"v_lshrrev_b32 {T[3]}, 1, {T[1]}"); P(f"v_and_b32 {T[3]}, 3, {T[3]}"); P(f"v_lshlrev_b32 {T[3]}, 1, {T[3]}")
        P(f"v_xor_b32 {T[2]}, {T[2]}, {T[3]}"); P(f"v_lshlrev_b32 {T[2]}, 4, {T[2]}")
        P(f"v_mul_u32_u24 {T[1]}, 1152, {T[1]}"); P(f"v_add_u32 {T[1]}, {T[1]}, {T[2]}")
        P(f"v_add_u32 v{V_WG[u]}, s{S_WGB}, {T[1]}")
    P(f"s_lshr_b32 s{t[2]}, s{S_W}, 1"); P(f"s_lshl_b32 s{t[2]}, s{t[2]}, 12"); P(f"v_add_u32 v{V_OA}, s{t[2]}, v{V_OG}")
    P(f"v_lshrrev_b32 {T[0]}, 4, {L}"); P(f"v_and_b32 {T[1]}, 15, {L}"); P(f"v_lshrrev_b32 {T[1]}, 2, {T[1]}")
    P(f"v_lshlrev_b32 {T[2]}, 2, {T[0]}"); P(f"v_add_u32 {T[2]}, {T[2]}, {T[1]}")
    P(f"v_lshrrev_b32 {T[3]}, 1, {T[2]}"); P(f"v_and_b32 {T[3]}, 3, {T[3]}"); P(f"v_lshlrev_b32 {T[3]}, 1, {T[3]}")
    P(f"v_mul_u32_u24 {T[4]}, 384, {T[2]}")
    P(f"v_and_b32 {T[5]}, 3, {L}"); P(f"v_lshrrev_b32 {T[6]}, 1, {T[5]}"); P(f"v_and_b32 {T[5]}, 1, {T[5]}"); P(f"v_lshlrev_b32 {T[5]}, 3, {T[5]}")
    P(f"v_add_u32 {T[4]}, {T[4]}, {T[5]}"); P(f"v_add_u32 {T[4]}, {WBASE}, {T[4]}")
    P(f"s_and_b32 s{t[2]}, s{S_W}, 1"); P(f"s_mul_i32 s{t[2]}, s{t[2]}, 12")
    for nt in range(6):
        P(f"s_add_u32 s{t[3]}, s{t[2]}, {2*nt}"); P(f"v_add_u32 {T[7]}, s{t[3]}, {T[6]}"); P(f"v_xor_b32 {T[7]}, {T[7]}, {T[3]}")
        P(f"v_lshlrev_b32 {T[7]}, 4, {T[7]}"); P(f"v_add_u32 v{V_WA[nt]}, {T[7]}, {T[4]}")
    P(f"s_mov_b32 s{S_SRDO}, s72"); P(f"s_mov_b32 s{S_SRDO+1}, s73"); P(f"s_mov_b32 s{S_SRDO+2}, {2*80*128*1024}"); P(f"s_mov_b32 s{S_SRDO+3}, 0x20000")
    P(f"s_mov_b32 s{S_SRDW}, s64"); P(f"s_mov_b32 s{S_SRDW+1}, s65"); P(f"s_mov_b32 s{S_SRDW+2}, {4096*1152}"); P(f"s_mov_b32 s{S_SRDW+3}, 0x20000")
    P(f"s_add_u32 s{S_SRDX}, s72, {EX_OFF}"); P(f"s_addc_u32 s{S_SRDX+1}, s73, 0"); P(f"s_mov_b32 s{S_SRDX+2}, {60*16*12288}"); P(f"s_mov_b32 s{S_SRDX+3}, 0x20000")
    P(f"s_mov_b32 s{S_SRDOUT}, s68"); P(f"s_mov_b32 s{S_SRDOUT+1}, s69"); P(f"s_mov_b32 s{S_SRDOUT+2}, {1280*2304}"); P(f"s_mov_b32 s{S_SRDOUT+3}, 0x20000")
    P(f"s_lshl_b32 s{S_OL}, s{S_W}, 11"); P(f"s_mul_i32 s{S_WL}, s{S_W}, 3072"); P(f"s_add_u32 s{S_WL}, s{S_WL}, {WBASE}")
    for k in range(96): P(f"v_mov_b32 v{ACC + k}, 0")
    P("s_barrier")
    take(S_KSC, S_KWC)
    stamp()

    osc = " sc1" if opts.get("osc1") else ""
    def dma_stage(s, nxt):
        buf = s % NBUF; tag = f"S{'n' if nxt else 'c'}{s}"
        ks, kw = (S_KSN, S_KWN) if nxt else (S_KSC, S_KWC)
        def dm(txt):
            def f(): P(txt); vq.push(tag)
            return f
        out = [f"s_mul_i32 s{t[8]}, s{56+s}, 81920", f"s_add_u32 s{t[8]}, s{t[8]}, s{ks}", f"s_add_u32 m0, s{S_OL}, {buf*OST}",
               dm(f"buffer_load_dwordx4 v{V_OG}, s[{S_SRDO}:{S_SRDO+3}], s{t[8]} offen{osc} lds"),
               dm(f"buffer_load_dwordx4 v{V_OG}, s[{S_SRDO}:{S_SRDO+3}], s{t[8]} offen offset:1024{osc} lds"),
               f"s_mul_i32 s{t[9]}, s{56+s}, {32*1152}", f"s_add_u32 s{t[9]}, s{t[9]}, s{kw}"]
        for u in range(3):
            out.append(f"s_add_u32 m0, s{S_WL}, {buf*WST + u*1024}")
            out.append(dm(f"buffer_load_dwordx4 v{V_WG[u]}, s[{S_SRDW}:{S_SRDW+3}], s{'29' if False else t[9]} offen lds"))
        if opts.get("g2same"):
            out = [x for x in out]
        return out
    def run(l):
        for x in l:
            if callable(x): x()
            elif isinstance(x, list): run(x)
            else: P(x)
    def rd_stage(s):
        buf = s % NBUF; fs = s & 1
        res = [f"ds_read_b128 {vr(BFr(fs, rt))}, v{V_OA} offset:{buf*OST + rt*1024}" for rt in range(4)]
        for nt in range(6):
            for h in range(2):
                res.append(f"ds_read_b64_tr_b16 {vr(AFr(fs, nt) + 2*h, 2)}, v{V_WA[nt]} offset:{buf*WST + h*16*384}")
        return [res[0], res[4], res[5]] + res[1:4] + res[6:]
    def segment(last):
        for s in range(8):
            fs = s & 1
            mf = [f"v_mfma_f32_16x16x32_bf16 {vr(A_(rt, nt))}, {vr(AFr(fs, nt))}, {vr(BFr(fs, rt))}, {vr(A_(rt, nt))}" for nt in range(6) for rt in range(4)]
            for m in mf[:2]: P(m)
            if s < 7: vq.wait(P, f"Sc{s+1}")
            elif not last: vq.wait(P, "Sn0")
            if not (last and s == 7): P("s_barrier")
            dm = []
            if s + 3 < 8: dm = dma_stage(s + 3, False)
            elif not last:
                if s == 5: take(S_KSN, S_KWN)
                dm = dma_stage(s + 3 - 8, True)
            if s == 2 and not last:
                def fl():
                    P(f"buffer_load_dword {T[12]}, {VF_}, s[{S_SRDD}:{S_SRDD+3}], 0 offen sc1"); vq.push("F")
                dm = dm + [fl]
            rd = rd_stage(s + 1) if s < 7 else ([] if last else rd_stage(0))
            fill = []; di = ri = 0
            while di < len(dm) or ri < len(rd):
                if ri < len(rd): fill.append(rd[ri]); ri += 1
                if di < len(dm): fill.append(dm[di]); di += 1
            interleave(P, mf[2:], fill)
            if s == 4 and not last:
                P.autolgkm = False
                P("s_waitcnt lgkmcnt(0)")
                nf = len(vq.q) - 1 - vq.q.index("F") if "F" in vq.q else 63
                pick(nf if nf > 0 else 63)
                P.autolgkm = True
    P.autolgkm = True
    for i in range(3): run(dma_stage(i, False))
    vq.wait(P, "Sc0"); P("s_barrier"); run(rd_stage(0))
    P(f"s_mov_b32 s{t[10]}, 0")
    P("s_waitcnt lgkmcnt(0)")
    q0 = list(vq.q)
    if opts.get("g2unroll"):
        for it in range(3):
            segment(False)
            P("s_waitcnt lgkmcnt(0)")
            vq.q = [x.replace("Sn", "Sc") for x in vq.q if x != "F"]
            assert vq.q == q0, (vq.q, q0)
            P(f"s_mov_b32 s{S_KSC}, s{S_KSN}"); P(f"s_mov_b32 s{S_KWC}, s{S_KWN}")
            stamp()
    else:
        if opts.get("align"): P.raw(".p2align 6")
        P.label("L_g2_seg")
        segment(False)
        P("s_waitcnt lgkmcnt(0)")
        vq.q = [x.replace("Sn", "Sc") for x in vq.q if x != "F"]
        assert vq.q == q0, (vq.q, q0)
        P(f"s_mov_b32 s{S_KSC}, s{S_KSN}"); P(f"s_mov_b32 s{S_KWC}, s{S_KWN}")
        P(f"s_add_u32 s{t[10]}, s{t[10]}, 1"); P(f"s_cmp_lt_u32 s{t[10]}, 3"); P("s_cbranch_scc1 L_g2_seg")
    segment(True)
    P("s_waitcnt lgkmcnt(0)")
    P.autolgkm = False
    stamp()
    PK = 128
    P(f"s_mul_i32 s{t[0]}, s{S_P}, 30"); P(f"s_add_u32 s{t[0]}, s{t[0]}, s{S_TK}")
    P(f"s_mul_i32 s{t[2]}, s{S_W}, 3072")
    P(f"v_lshlrev_b32 {T[0]}, 4, {L}")
    for j in range(4):
        lab = f"L_g2_skip{j}"
        P(f"s_cmp_eq_u32 s{S_KQ}, {j}"); P(f"s_cbranch_scc1 {lab}")
        for nt in range(6):
            a = A_(j, nt); d = PK + j * 12 + nt * 2
            P(f"v_cvt_pk_bf16_f32 v{d}, v{a}, v{a+1}"); P(f"v_cvt_pk_bf16_f32 v{d+1}, v{a+2}, v{a+3}")
        P(f"s_lshl_b32 s{t[3]}, s{t[0]}, 2"); P(f"s_add_u32 s{t[3]}, s{t[3]}, {j}"); P(f"s_lshl_b32 s{t[3]}, s{t[3]}, 2"); P(f"s_add_u32 s{t[3]}, s{t[3]}, s{S_KQ}")
        P(f"s_mul_i32 s{t[3]}, s{t[3]}, 12288"); P(f"s_add_u32 s{t[3]}, s{t[3]}, s{t[2]}")
        for u in range(3):
            P(f"buffer_store_dwordx4 {vr(PK + j*12 + 4*u)}, {T[0]}, s[{S_SRDX}:{S_SRDX+3}], s{t[3]} offen offset:{u*1024} sc1")
        P.label(lab)
    OWN = 208
    for j in range(4):
        lab = f"L_g2_mv{j}"
        P(f"s_cmp_lg_u32 s{S_KQ}, {j}"); P(f"s_cbranch_scc1 {lab}")
        for nt in range(6):
            for r in range(4): P(f"v_mov_b32 v{OWN + nt*4 + r}, v{A_(j, nt) + r}")
        P.label(lab)
    P("s_waitcnt vmcnt(0)"); P("s_barrier")
    P(f"s_cmp_lg_u32 s{S_W}, 0"); P("s_cbranch_scc1 L_g2_xw")
    P(f"s_lshl_b32 s{t[4]}, s{t[0]}, 2"); P(f"s_add_u32 s{t[4]}, s{t[4]}, 256")
    P(f"v_and_b32 {T[3]}, 3, {L}"); P(f"v_add_u32 {T[3]}, s{t[4]}, {T[3]}"); P(f"v_lshlrev_b32 {T[3]}, 7, {T[3]}")
    P(f"s_add_u32 s{t[4]}, s{t[4]}, s{S_KQ}"); P(f"s_lshl_b32 s{t[4]}, s{t[4]}, 7")
    P(f"v_mov_b32 {T[1]}, s{t[4]}"); P(f"v_mov_b32 {T[2]}, s{S_NONCE}")
    P(f"v_cmp_eq_u32 vcc, 0, {L}"); P("s_and_saveexec_b64 s[74:75], vcc")
    P(f"buffer_store_dword {T[2]}, {T[1]}, s[{S_SRDD}:{S_SRDD+3}], 0 offen sc1")
    P("s_mov_b64 exec, s[74:75]")
    P(f"s_mov_b32 s{t[5]}, 0")
    P.label("L_g2_xpoll")
    P(f"buffer_load_dword {T[4]}, {T[3]}, s[{S_SRDD}:{S_SRDD+3}], 0 offen sc1")
    P("s_waitcnt vmcnt(0)")
    P(f"v_cmp_ne_u32 vcc, s{S_NONCE}, {T[4]}")
    P("s_cbranch_vccz L_g2_xw")
    P(f"s_sleep {opts.get('slp', 1)}")
    P(f"s_add_u32 s{t[5]}, s{t[5]}, 1"); P(f"s_cmp_lt_u32 s{t[5]}, 400000"); P("s_cbranch_scc1 L_g2_xpoll")
    P.label("L_g2_xw")
    P("s_barrier")
    stamp()
    R0 = 128
    for u in range(1, 4):
        P(f"s_add_u32 s{t[4]}, s{S_KQ}, {u}"); P(f"s_and_b32 s{t[4]}, s{t[4]}, 3")
        P(f"s_lshl_b32 s{t[3]}, s{t[0]}, 2"); P(f"s_add_u32 s{t[3]}, s{t[3]}, s{S_KQ}"); P(f"s_lshl_b32 s{t[3]}, s{t[3]}, 2"); P(f"s_add_u32 s{t[3]}, s{t[3]}, s{t[4]}")
        P(f"s_mul_i32 s{t[3]}, s{t[3]}, 12288"); P(f"s_add_u32 s{t[3]}, s{t[3]}, s{t[2]}")
        for c in range(3):
            P(f"buffer_load_dwordx4 {vr(R0 + (u-1)*12 + c*4)}, {T[0]}, s[{S_SRDX}:{S_SRDX+3}], s{t[3]} offen offset:{c*1024} sc1")
    P(f"s_lshl_b32 s{t[3]}, s{S_MT}, 3"); P(f"s_lshr_b32 s{t[4]}, s{S_W}, 1"); P(f"s_lshl_b32 s{t[4]}, s{t[4]}, 2"); P(f"s_add_u32 s{t[3]}, s{t[3]}, s{t[4]}")
    P(f"s_add_u32 s{t[3]}, s{t[3]}, s{S_KQ}"); P(f"s_mul_i32 s{t[3]}, s{t[3]}, {16*2304}")
    P(f"s_mul_i32 s{t[4]}, s{S_P}, 1152"); P(f"s_add_u32 s{t[3]}, s{t[3]}, s{t[4]}")
    P(f"s_mul_i32 s{t[4]}, s{S_N3}, 384"); P(f"s_add_u32 s{t[3]}, s{t[3]}, s{t[4]}")
    P(f"s_and_b32 s{t[4]}, s{S_W}, 1"); P(f"s_mul_i32 s{t[4]}, s{t[4]}, 192"); P(f"s_add_u32 s{t[3]}, s{t[3]}, s{t[4]}")
    P(f"v_and_b32 {T[1]}, 15, {L}"); P(f"v_mul_u32_u24 {T[1]}, 2304, {T[1]}"); P(f"v_lshrrev_b32 {T[2]}, 4, {L}"); P(f"v_lshlrev_b32 {T[2]}, 4, {T[2]}")
    P(f"v_add_u32 {T[1]}, {T[1]}, {T[2]}")
    P(f"s_mov_b32 s{t[5]}, 0xffff0000")
    for u in range(3):
        P(f"s_waitcnt vmcnt({3*(2-u)})")
        for k in range(12):
            src = R0 + u*12 + k
            d = OWN + (k // 2) * 4 + (k & 1) * 2
            P(f"v_lshlrev_b32 {T[3]}, 16, v{src}"); P(f"v_and_b32 {T[4]}, s{t[5]}, v{src}")
            P(f"v_add_f32 v{d}, v{d}, {T[3]}"); P(f"v_add_f32 v{d+1}, v{d+1}, {T[4]}")
    for u in range(3):
        A = OWN + (2*u) * 4; B = OWN + (2*u + 1) * 4
        P(f"v_cvt_pk_bf16_f32 v{A}, v{A}, v{A+1}"); P(f"v_cvt_pk_bf16_f32 v{A+1}, v{A+2}, v{A+3}")
        P(f"v_cvt_pk_bf16_f32 v{B}, v{B}, v{B+1}"); P(f"v_cvt_pk_bf16_f32 v{B+1}, v{B+2}, v{B+3}")
    for u in range(3):
        A = OWN + (2*u) * 4; B = OWN + (2*u + 1) * 4
        P(f"v_permlane32_swap_b32 v{A}, v{B}"); P(f"v_permlane32_swap_b32 v{A+1}, v{B+1}")
    for u in range(3):
        A = OWN + (2*u) * 4; B = OWN + (2*u + 1) * 4
        P(f"v_permlane16_swap_b32 v{A}, v{B}"); P(f"v_permlane16_swap_b32 v{A+1}, v{B+1}")
    for u in range(3):
        A = OWN + (2*u) * 4; B = OWN + (2*u + 1) * 4
        P(f"v_mov_b32 v{A+2}, v{B}"); P(f"v_mov_b32 v{A+3}, v{B+1}")
    for u in range(3):
        A = OWN + (2*u) * 4
        P(f"buffer_store_dwordx4 {vr(A)}, {T[1]}, s[{S_SRDOUT}:{S_SRDOUT+3}], s{t[3]} offen offset:{u*64}")
    if stamps:
        P("s_waitcnt vmcnt(0)")
        stamp()
        P("s_waitcnt lgkmcnt(0)")
        for i in range(8): P(f"v_mov_b32 v{4+i}, s{80+2*min(i, nst[0]-1)}")
        P(f"s_lshl_b32 s{t[0]}, s2, 2"); P(f"s_add_u32 s{t[0]}, s{t[0]}, s{S_W}"); P(f"s_lshl_b32 s{t[0]}, s{t[0]}, 5")
        P(f"s_add_u32 s76, s72, 0x4100000"); P("s_addc_u32 s77, s73, 0"); P("s_mov_b32 s78, 0x100000"); P("s_mov_b32 s79, 0x20000")
        P(f"v_mov_b32 v12, s{t[0]}"); P(f"v_cmp_eq_u32 vcc, 0, {L}"); P("s_and_saveexec_b64 s[74:75], vcc")
        P("buffer_store_dwordx4 v[4:7], v12, s[76:79], 0 offen")
        P("buffer_store_dwordx4 v[8:11], v12, s[76:79], 0 offen offset:16")
    P.label("L_g2_done")
```

```python
from asmlib import *
from k1 import vr, ar, VQ, f2u

NBUF = 4
OST, WST = 16384, 12288
WBASE = NBUF * OST
SEL = WBASE + NBUF * WST + 64
EX_OFF = 0x2000000
FLAG_OFF = 0x3800000
ACC = 64
def A_(rt, nt): return ACC + (rt * 6 + nt) * 4
def BFr(s, rt): return s * 32 + rt * 4
def AFr(s, nt): return 64 + s * 24 + nt * 4
V_OA = 1
V_WA = [2, 3, 4, 5, 6, 7]
V_OG = 8
V_WG = [9, 10, 11]
V_T = list(range(12, 32))

S_SRDO, S_SRDW, S_SRDX, S_SRDOUT, S_SRDD = 4, 8, 12, 16, 20
S_W, S_P, S_KE, S_MT, S_N3 = 24, 25, 26, 27, 28
S_OG0 = 29
S_KSC, S_KWC, S_KSN, S_KWN = 30, 31, 32, 33
S_WGB = 34
S_DONE = 35
S_GRP = 36
S_SEG = 37
S_OL, S_WL = 38, 39
S_NONCE = 66
S_T = list(range(40, 56))

def gen_g8(P, opts, S1):
    stamps = opts.get("stamps", False) and opts.get("stgrp") in ("k2", "all")
    nst = opts.setdefault("_nst", [0])
    def stamp():
        if stamps and nst[0] < 8:
            P(f"s_memrealtime s[{80+2*nst[0]}:{81+2*nst[0]}]"); nst[0] += 1
    vq = VQ(); t = S_T
    T = [f"v{x}" for x in V_T]; L = "v0"
    slp = opts.get("slp", 2)
    P(f"s_lshl_b32 s{t[0]}, s{S1['P']}, 3"); P(f"s_lshr_b32 s{t[1]}, s{S1['B']}, 1"); P(f"s_add_u32 s{t[0]}, s{t[0]}, s{t[1]}"); P(f"s_lshl_b32 s{t[0]}, s{t[0]}, 4")
    P(f"s_lshr_b32 s{t[1]}, s{S1['H']}, 1"); P(f"s_add_u32 s{t[0]}, s{t[0]}, s{t[1]}"); P(f"s_lshl_b32 s{t[0]}, s{t[0]}, 7")
    P("s_load_dwordx4 s[68:71], s[0:1], 80")
    P("s_load_dwordx2 s[72:73], s[0:1], 96")
    P(f"s_and_b32 s{t[2]}, s2, 7"); P(f"s_lshr_b32 s{S_P}, s{t[2]}, 2"); P(f"s_and_b32 s{S_KE}, s{t[2]}, 3"); P(f"s_lshl_b32 s{S_KE}, s{S_KE}, 1")
    P(f"s_lshr_b32 s{t[3]}, s2, 3"); P(f"s_and_b32 s{t[4]}, s{t[3]}, 1"); P(f"s_add_u32 s{S_KE}, s{S_KE}, s{t[4]}")
    P(f"s_lshr_b32 s{S_GRP}, s{t[3]}, 1")
    P(f"s_mul_i32 s{t[4]}, s{S_P}, 40"); P(f"s_add_u32 s{t[6]}, s0, s{t[4]}"); P(f"s_addc_u32 s{t[7]}, s1, 0")
    P(f"s_load_dwordx2 s[64:65], s[{t[6]}:{t[7]}], 32")
    P("s_waitcnt vmcnt(0) lgkmcnt(0)")
    P(f"s_mov_b32 s{S_SRDD}, s70"); P(f"s_mov_b32 s{S_SRDD+1}, s71"); P(f"s_mov_b32 s{S_SRDD+2}, 256"); P(f"s_mov_b32 s{S_SRDD+3}, 0x20000")
    P(f"s_mov_b32 s{t[5]}, 0")
    P.label("L_g8_nonce")
    P(f"v_readfirstlane_b32 s{S_NONCE}, v234")
    P(f"s_cmp_lg_u32 s{S_NONCE}, 0"); P("s_cbranch_scc1 L_g8_nonce_ok")
    P(f"v_mov_b32 v235, 0")
    P(f"buffer_load_dword v234, v235, s[{S_SRDD}:{S_SRDD+3}], 0 offen sc1"); P("s_waitcnt vmcnt(0)")
    P(f"s_add_u32 s{t[5]}, s{t[5]}, 1"); P(f"s_cmp_lt_u32 s{t[5]}, 400000"); P("s_cbranch_scc1 L_g8_nonce")
    P.label("L_g8_nonce_ok")
    P("s_barrier")
    stamp()
    P(f"s_add_u32 s{S_SRDD}, s72, {FLAG_OFF}"); P(f"s_addc_u32 s{S_SRDD+1}, s73, 0"); P(f"s_mov_b32 s{S_SRDD+2}, {512*128}"); P(f"s_mov_b32 s{S_SRDD+3}, 0x20000")
    P(f"v_mov_b32 {T[14]}, {SEL}")
    P(f"s_cmp_lg_u32 s{S_W}, 0"); P("s_cbranch_scc1 L_g8_sig")
    P(f"v_mov_b32 {T[1]}, s{t[0]}"); P(f"v_mov_b32 {T[2]}, s{S_NONCE}")
    P(f"v_cmp_eq_u32 vcc, 0, {L}"); P("s_and_saveexec_b64 s[74:75], vcc")
    P(f"buffer_store_dword {T[2]}, {T[1]}, s[{S_SRDD}:{S_SRDD+3}], 0 offen sc1")
    P("s_mov_b64 exec, s[74:75]")
    P.label("L_g8_sig")
    P(f"s_cmp_ge_u32 s{S_GRP}, 15"); P("s_cbranch_scc1 L_g8_done")
    P(f"s_mul_hi_u32 s{S_MT}, s{S_GRP}, 0x55555556"); P(f"s_mul_i32 s{t[2]}, s{S_MT}, 3"); P(f"s_sub_u32 s{S_N3}, s{S_GRP}, s{t[2]}")
    P(f"s_mul_i32 s{t[2]}, s{S_P}, 15"); P(f"s_add_u32 s{S_GRP}, s{S_GRP}, s{t[2]}")
    P(f"s_lshl_b32 s{t[2]}, s{S_P}, 7"); P(f"s_lshl_b32 s{t[3]}, s{S_KE}, 4"); P(f"s_add_u32 s{t[2]}, s{t[2]}, s{t[3]}"); P(f"s_mul_i32 s{t[2]}, s{t[2]}, 80")
    P(f"s_lshl_b32 s{t[3]}, s{S_MT}, 4"); P(f"s_add_u32 s{t[2]}, s{t[2]}, s{t[3]}")
    P(f"s_lshl_b32 s{t[3]}, s{S_W}, 2"); P(f"s_add_u32 s{t[2]}, s{t[2]}, s{t[3]}")
    P(f"s_lshl_b32 s{S_OG0}, s{t[2]}, 10")
    P(f"s_mul_i32 s{S_WGB}, s{S_KE}, {512*1152}"); P(f"s_mul_i32 s{t[2]}, s{S_N3}, 384"); P(f"s_add_u32 s{S_WGB}, s{S_WGB}, s{t[2]}")
    P(f"s_mul_i32 s{t[2]}, s{S_W}, {8*1152}"); P(f"s_add_u32 s{S_WGB}, s{S_WGB}, s{t[2]}")
    P(f"s_lshl_b32 s{t[0]}, s{S_MT}, 8"); P(f"s_add_u32 s{t[1]}, s{t[0]}, 255")
    P(f"s_mul_i32 s{t[0]}, s{t[0]}, 52429"); P(f"s_lshr_b32 s{t[0]}, s{t[0]}, 23")
    P(f"s_mul_i32 s{t[1]}, s{t[1]}, 52429"); P(f"s_lshr_b32 s{t[1]}, s{t[1]}, 23")
    P(f"s_add_u32 s{t[2]}, s{t[0]}, s{t[1]}"); P(f"s_lshr_b32 s{t[2]}, s{t[2]}, 1")
    P(f"v_lshrrev_b32 {T[8]}, 1, {L}"); P(f"v_min_u32 {T[8]}, 2, {T[8]}")
    VF_ = T[11]
    P(f"v_mov_b32 {VF_}, s{t[0]}"); P(f"v_mov_b32 {T[9]}, s{t[2]}"); P(f"v_cmp_eq_u32 vcc, 1, {T[8]}"); P(f"v_cndmask_b32 {VF_}, {VF_}, {T[9]}, vcc")
    P(f"v_mov_b32 {T[9]}, s{t[1]}"); P(f"v_cmp_eq_u32 vcc, 2, {T[8]}"); P(f"v_cndmask_b32 {VF_}, {VF_}, {T[9]}, vcc")
    P(f"s_lshl_b32 s{t[2]}, s{S_P}, 3"); P(f"v_add_u32 {VF_}, s{t[2]}, {VF_}"); P(f"v_lshlrev_b32 {VF_}, 4, {VF_}")
    P(f"s_lshl_b32 s{t[2]}, s{S_KE}, 1"); P(f"v_and_b32 {T[9]}, 1, {L}"); P(f"v_add_u32 {T[9]}, s{t[2]}, {T[9]}")
    P(f"v_add_u32 {VF_}, {VF_}, {T[9]}"); P(f"v_lshlrev_b32 {VF_}, 7, {VF_}")
    P(f"s_mov_b32 s{S_DONE}, 0")
    P(f"s_mul_i32 s{t[3]}, s{S_N3}, 3"); P(f"s_add_u32 s{t[3]}, s{t[3]}, s{S_MT}")
    for k in range(8):
        P(f"s_add_u32 s{56+k}, s{t[3]}, {k}"); P(f"s_and_b32 s{56+k}, s{56+k}, 7")
    npick = [0]
    def pick(preloaded):
        k = npick[0]; npick[0] += 1
        P(f"s_cmp_lg_u32 s{S_W}, 0"); P(f"s_cbranch_scc1 L_g8_pk{k}_end")
        P(f"s_mov_b32 s{t[5]}, 0")
        if preloaded:
            P(f"s_waitcnt vmcnt({preloaded})"); P(f"s_branch L_g8_pk{k}_chk")
        P.label(f"L_g8_pk{k}_ld")
        P(f"buffer_load_dword {T[12]}, {VF_}, s[{S_SRDD}:{S_SRDD+3}], 0 offen sc1")
        P("s_waitcnt vmcnt(0)")
        P.label(f"L_g8_pk{k}_chk")
        P(f"v_cmp_eq_u32 vcc, s{S_NONCE}, {T[12]}")
        P(f"s_lshr_b32 s{t[7]}, vcc_lo, 2"); P(f"s_and_b32 s{t[6]}, vcc_lo, s{t[7]}")
        P(f"s_lshr_b32 s{t[7]}, vcc_lo, 4"); P(f"s_and_b32 s{t[6]}, s{t[6]}, s{t[7]}")
        P(f"s_and_b32 s{t[6]}, s{t[6]}, 3"); P(f"s_andn2_b32 s{t[6]}, s{t[6]}, s{S_DONE}")
        P(f"s_cmp_lg_u32 s{t[6]}, 0"); P(f"s_cbranch_scc1 L_g8_pk{k}_got")
        P(f"s_sleep {slp}")
        P(f"s_add_u32 s{t[5]}, s{t[5]}, 1"); P(f"s_cmp_lt_u32 s{t[5]}, 400000"); P(f"s_cbranch_scc1 L_g8_pk{k}_ld")
        P(f"s_andn2_b32 s{t[6]}, 3, s{S_DONE}")
        P.label(f"L_g8_pk{k}_got")
        P(f"s_ff1_i32_b32 s{t[6]}, s{t[6]}")
        P(f"v_mov_b32 {T[13]}, s{t[6]}")
        P(f"ds_write_b32 {T[14]}, {T[13]}")
        P("s_waitcnt lgkmcnt(0)")
        P.label(f"L_g8_pk{k}_end")
    def take(dks, dkw):
        P(f"ds_read_b32 {T[13]}, {T[14]}"); P("s_waitcnt lgkmcnt(0)")
        P(f"v_readfirstlane_b32 s{S_SEG}, {T[13]}")
        P(f"s_lshl_b32 s{t[6]}, 1, s{S_SEG}"); P(f"s_or_b32 s{S_DONE}, s{S_DONE}, s{t[6]}")
        P(f"s_mul_i32 s{dks}, s{S_SEG}, {8*81920}"); P(f"s_add_u32 s{dks}, s{dks}, s{S_OG0}")
        P(f"s_mul_i32 s{dkw}, s{S_SEG}, {8*32*1152}")
    pick(None)
    P(f"v_lshlrev_b32 v{V_OG}, 4, {L}")
    for u in range(3):
        P(f"v_add_u32 {T[0]}, {64*u}, {L}")
        P(f"v_mul_u32_u24 {T[1]}, 2731, {T[0]}"); P(f"v_lshrrev_b32 {T[1]}, 16, {T[1]}")
        P(f"v_mul_u32_u24 {T[2]}, 24, {T[1]}"); P(f"v_sub_u32 {T[2]}, {T[0]}, {T[2]}")
        P(f"v_lshrrev_b32 {T[3]}, 1, {T[1]}"); P(f"v_and_b32 {T[3]}, 3, {T[3]}"); P(f"v_lshlrev_b32 {T[3]}, 1, {T[3]}")
        P(f"v_xor_b32 {T[2]}, {T[2]}, {T[3]}"); P(f"v_lshlrev_b32 {T[2]}, 4, {T[2]}")
        P(f"v_mul_u32_u24 {T[1]}, 1152, {T[1]}"); P(f"v_add_u32 {T[1]}, {T[1]}, {T[2]}")
        P(f"v_add_u32 v{V_WG[u]}, s{S_WGB}, {T[1]}")
    P(f"s_lshr_b32 s{t[2]}, s{S_W}, 1"); P(f"s_lshl_b32 s{t[2]}, s{t[2]}, 13"); P(f"v_add_u32 v{V_OA}, s{t[2]}, v{V_OG}")
    P(f"v_lshrrev_b32 {T[0]}, 4, {L}"); P(f"v_and_b32 {T[1]}, 15, {L}"); P(f"v_lshrrev_b32 {T[1]}, 2, {T[1]}")
    P(f"v_lshlrev_b32 {T[2]}, 2, {T[0]}"); P(f"v_add_u32 {T[2]}, {T[2]}, {T[1]}")
    P(f"v_lshrrev_b32 {T[3]}, 1, {T[2]}"); P(f"v_and_b32 {T[3]}, 3, {T[3]}"); P(f"v_lshlrev_b32 {T[3]}, 1, {T[3]}")
    P(f"v_mul_u32_u24 {T[4]}, 384, {T[2]}")
    P(f"v_and_b32 {T[5]}, 3, {L}"); P(f"v_lshrrev_b32 {T[6]}, 1, {T[5]}"); P(f"v_and_b32 {T[5]}, 1, {T[5]}"); P(f"v_lshlrev_b32 {T[5]}, 3, {T[5]}")
    P(f"v_add_u32 {T[4]}, {T[4]}, {T[5]}"); P(f"v_add_u32 {T[4]}, {WBASE}, {T[4]}")
    P(f"s_and_b32 s{t[2]}, s{S_W}, 1"); P(f"s_mul_i32 s{t[2]}, s{t[2]}, 12")
    for nt in range(6):
        P(f"s_add_u32 s{t[3]}, s{t[2]}, {2*nt}"); P(f"v_add_u32 {T[7]}, s{t[3]}, {T[6]}"); P(f"v_xor_b32 {T[7]}, {T[7]}, {T[3]}")
        P(f"v_lshlrev_b32 {T[7]}, 4, {T[7]}"); P(f"v_add_u32 v{V_WA[nt]}, {T[7]}, {T[4]}")
    P(f"s_mov_b32 s{S_SRDO}, s72"); P(f"s_mov_b32 s{S_SRDO+1}, s73"); P(f"s_mov_b32 s{S_SRDO+2}, {2*80*128*1024}"); P(f"s_mov_b32 s{S_SRDO+3}, 0x20000")
    P(f"s_mov_b32 s{S_SRDW}, s64"); P(f"s_mov_b32 s{S_SRDW+1}, s65"); P(f"s_mov_b32 s{S_SRDW+2}, {4096*1152}"); P(f"s_mov_b32 s{S_SRDW+3}, 0x20000")
    P(f"s_add_u32 s{S_SRDX}, s72, {EX_OFF}"); P(f"s_addc_u32 s{S_SRDX+1}, s73, 0"); P(f"s_mov_b32 s{S_SRDX+2}, {30*64*12288}"); P(f"s_mov_b32 s{S_SRDX+3}, 0x20000")
    P(f"s_mov_b32 s{S_SRDOUT}, s68"); P(f"s_mov_b32 s{S_SRDOUT+1}, s69"); P(f"s_mov_b32 s{S_SRDOUT+2}, {1280*2304}"); P(f"s_mov_b32 s{S_SRDOUT+3}, 0x20000")
    P(f"s_lshl_b32 s{S_OL}, s{S_W}, 12"); P(f"s_mul_i32 s{S_WL}, s{S_W}, 3072"); P(f"s_add_u32 s{S_WL}, s{S_WL}, {WBASE}")
    P("s_barrier")
    take(S_KSC, S_KWC)
    stamp()
    osc = " sc1" if opts.get("osc1", True) else ""
    def dma_stage(s, nxt):
        buf = s % NBUF; tag = f"S{'n' if nxt else 'c'}{s}"
        ks, kw = (S_KSN, S_KWN) if nxt else (S_KSC, S_KWC)
        def dm(txt):
            def f(): P(txt); vq.push(tag)
            return f
        out = [f"s_mul_i32 s{t[8]}, s{56+s}, 81920", f"s_add_u32 s{t[8]}, s{t[8]}, s{ks}", f"s_add_u32 m0, s{S_OL}, {buf*OST}"]
        for u in range(4):
            o = f" offset:{u*1024}" if u else ""
            out.append(dm(f"buffer_load_dwordx4 v{V_OG}, s[{S_SRDO}:{S_SRDO+3}], s{t[8]} offen{o}{osc} lds"))
        out += [f"s_mul_i32 s{t[9]}, s{56+s}, {32*1152}", f"s_add_u32 s{t[9]}, s{t[9]}, s{kw}"]
        for u in range(3):
            out.append(f"s_add_u32 m0, s{S_WL}, {buf*WST + u*1024}")
            out.append(dm(f"buffer_load_dwordx4 v{V_WG[u]}, s[{S_SRDW}:{S_SRDW+3}], s{t[9]} offen lds"))
        return out
    def run(l):
        for x in l:
            if callable(x): x()
            elif isinstance(x, list): run(x)
            else: P(x)
    def rd_stage(s):
        buf = s % NBUF; fs = s & 1
        B = [f"ds_read_b128 {ar(BFr(fs, rt))}, v{V_OA} offset:{buf*OST + rt*1024}" for rt in range(8)]
        A = []
        for nt in range(6):
            for h in range(2):
                A.append(f"ds_read_b64_tr_b16 {ar(AFr(fs, nt) + 2*h, 2)}, v{V_WA[nt]} offset:{buf*WST + h*16*384}")
        return [B[0], A[0], A[1]] + B[1:] + A[2:]
    def segment(last, first):
        for s in range(8):
            fs = s & 1
            mf = []
            for nt in range(6):
                for rt in range(8):
                    c = "0" if (first and s == 0) else vr(A_(rt, nt))
                    mf.append(f"v_mfma_f32_16x16x32_bf16 {vr(A_(rt, nt))}, {ar(AFr(fs, nt))}, {ar(BFr(fs, rt))}, {c}")
            for m in mf[:4]: P(m)
            if s < 7: vq.wait(P, f"Sc{s+1}")
            elif not last: vq.wait(P, "Sn0")
            if not (last and s == 7): P("s_barrier")
            dm = []
            if s + 3 < 8: dm = dma_stage(s + 3, False)
            elif not last:
                if s == 5: take(S_KSN, S_KWN)
                dm = dma_stage(s + 3 - 8, True)
            if s == 2 and not last:
                def fl():
                    P(f"buffer_load_dword {T[12]}, {VF_}, s[{S_SRDD}:{S_SRDD+3}], 0 offen sc1"); vq.push("F")
                dm = dm + [fl]
            rd = rd_stage(s + 1) if s < 7 else ([] if last else rd_stage(0))
            fill = []; di = ri = 0
            while di < len(dm) or ri < len(rd):
                if ri < len(rd): fill.append(rd[ri]); ri += 1
                if di < len(dm): fill.append(dm[di]); di += 1
            interleave(P, mf[4:40], fill)
            for m in mf[40:]: P(m)
            if s == 4 and not last:
                P.autolgkm = False
                P("s_waitcnt lgkmcnt(0)")
                nf = len(vq.q) - 1 - vq.q.index("F") if "F" in vq.q else 63
                pick(nf if nf > 0 else 63)
                P.autolgkm = True
    P.autolgkm = True
    for i in range(3): run(dma_stage(i, False))
    vq.wait(P, "Sc0"); P("s_barrier"); run(rd_stage(0))
    segment(False, True)
    vq.q = [x.replace("Sn", "Sc") for x in vq.q if x != "F"]
    P(f"s_mov_b32 s{S_KSC}, s{S_KSN}"); P(f"s_mov_b32 s{S_KWC}, s{S_KWN}")
    stamp()
    segment(True, False)
    P("s_waitcnt lgkmcnt(0)")
    P.autolgkm = False
    stamp()
    P(f"s_mul_i32 s{t[2]}, s{S_W}, 3072")
    P(f"v_lshlrev_b32 {T[0]}, 4, {L}")
    for j in range(8):
        lab = f"L_g8_skip{j}"
        P(f"s_cmp_eq_u32 s{S_KE}, {j}"); P(f"s_cbranch_scc1 {lab}")
        for u in range(3):
            A = A_(j, 2*u); B = A_(j, 2*u + 1)
            P(f"v_cvt_pk_bf16_f32 v{A}, v{A}, v{A+1}"); P(f"v_cvt_pk_bf16_f32 v{A+1}, v{A+2}, v{A+3}")
            P(f"v_cvt_pk_bf16_f32 v{A+2}, v{B}, v{B+1}"); P(f"v_cvt_pk_bf16_f32 v{A+3}, v{B+2}, v{B+3}")
        P(f"s_lshl_b32 s{t[3]}, s{S_GRP}, 3"); P(f"s_add_u32 s{t[3]}, s{t[3]}, {j}"); P(f"s_lshl_b32 s{t[3]}, s{t[3]}, 3"); P(f"s_add_u32 s{t[3]}, s{t[3]}, s{S_KE}")
        P(f"s_mul_i32 s{t[3]}, s{t[3]}, 12288"); P(f"s_add_u32 s{t[3]}, s{t[3]}, s{t[2]}")
        for u in range(3):
            P(f"buffer_store_dwordx4 {vr(A_(j, 2*u))}, {T[0]}, s[{S_SRDX}:{S_SRDX+3}], s{t[3]} offen offset:{u*1024} sc1")
        P.label(lab)
    OWN = 32
    for j in range(8):
        lab = f"L_g8_mv{j}"
        P(f"s_cmp_lg_u32 s{S_KE}, {j}"); P(f"s_cbranch_scc1 {lab}")
        for nt in range(6):
            for r in range(4): P(f"v_mov_b32 v{OWN + nt*4 + r}, v{A_(j, nt) + r}")
        P.label(lab)
    P("s_waitcnt vmcnt(0)"); P("s_barrier")
    P(f"s_cmp_lg_u32 s{S_W}, 0"); P("s_cbranch_scc1 L_g8_xw")
    P(f"s_lshl_b32 s{t[4]}, s{S_GRP}, 3"); P(f"s_add_u32 s{t[4]}, s{t[4]}, 256")
    P(f"v_and_b32 {T[3]}, 7, {L}"); P(f"v_add_u32 {T[3]}, s{t[4]}, {T[3]}"); P(f"v_lshlrev_b32 {T[3]}, 7, {T[3]}")
    P(f"s_add_u32 s{t[4]}, s{t[4]}, s{S_KE}"); P(f"s_lshl_b32 s{t[4]}, s{t[4]}, 7")
    P(f"v_mov_b32 {T[1]}, s{t[4]}"); P(f"v_mov_b32 {T[2]}, s{S_NONCE}")
    P(f"v_cmp_eq_u32 vcc, 0, {L}"); P("s_and_saveexec_b64 s[74:75], vcc")
    P(f"buffer_store_dword {T[2]}, {T[1]}, s[{S_SRDD}:{S_SRDD+3}], 0 offen sc1")
    P("s_mov_b64 exec, s[74:75]")
    P(f"s_mov_b32 s{t[5]}, 0")
    P.label("L_g8_xpoll")
    P(f"buffer_load_dword {T[4]}, {T[3]}, s[{S_SRDD}:{S_SRDD+3}], 0 offen sc1")
    P("s_waitcnt vmcnt(0)")
    P(f"v_cmp_ne_u32 vcc, s{S_NONCE}, {T[4]}")
    P("s_cbranch_vccz L_g8_xw")
    P(f"s_sleep {slp}")
    P(f"s_add_u32 s{t[5]}, s{t[5]}, 1"); P(f"s_cmp_lt_u32 s{t[5]}, 400000"); P("s_cbranch_scc1 L_g8_xpoll")
    P.label("L_g8_xw")
    P("s_barrier")
    stamp()
    R0 = 64
    for u in range(1, 8):
        P(f"s_add_u32 s{t[4]}, s{S_KE}, {u}"); P(f"s_and_b32 s{t[4]}, s{t[4]}, 7")
        P(f"s_lshl_b32 s{t[3]}, s{S_GRP}, 3"); P(f"s_add_u32 s{t[3]}, s{t[3]}, s{S_KE}"); P(f"s_lshl_b32 s{t[3]}, s{t[3]}, 3"); P(f"s_add_u32 s{t[3]}, s{t[3]}, s{t[4]}")
        P(f"s_mul_i32 s{t[3]}, s{t[3]}, 12288"); P(f"s_add_u32 s{t[3]}, s{t[3]}, s{t[2]}")
        for c in range(3):
            P(f"buffer_load_dwordx4 {vr(R0 + (u-1)*12 + c*4)}, {T[0]}, s[{S_SRDX}:{S_SRDX+3}], s{t[3]} offen offset:{c*1024} sc1")
    P(f"s_lshl_b32 s{t[3]}, s{S_MT}, 4"); P(f"s_lshr_b32 s{t[4]}, s{S_W}, 1"); P(f"s_lshl_b32 s{t[4]}, s{t[4]}, 3"); P(f"s_add_u32 s{t[3]}, s{t[3]}, s{t[4]}")
    P(f"s_add_u32 s{t[3]}, s{t[3]}, s{S_KE}"); P(f"s_mul_i32 s{t[3]}, s{t[3]}, {16*2304}")
    P(f"s_mul_i32 s{t[4]}, s{S_P}, 1152"); P(f"s_add_u32 s{t[3]}, s{t[3]}, s{t[4]}")
    P(f"s_mul_i32 s{t[4]}, s{S_N3}, 384"); P(f"s_add_u32 s{t[3]}, s{t[3]}, s{t[4]}")
    P(f"s_and_b32 s{t[4]}, s{S_W}, 1"); P(f"s_mul_i32 s{t[4]}, s{t[4]}, 192"); P(f"s_add_u32 s{t[3]}, s{t[3]}, s{t[4]}")
    P(f"v_and_b32 {T[1]}, 15, {L}"); P(f"v_mul_u32_u24 {T[1]}, 2304, {T[1]}"); P(f"v_lshrrev_b32 {T[2]}, 4, {L}"); P(f"v_lshlrev_b32 {T[2]}, 4, {T[2]}")
    P(f"v_add_u32 {T[1]}, {T[1]}, {T[2]}")
    P(f"s_mov_b32 s{t[5]}, 0xffff0000")
    for u in range(7):
        P(f"s_waitcnt vmcnt({3*(6-u)})")
        for k in range(12):
            src = R0 + u*12 + k
            c, q = divmod(k, 4)
            d = OWN + (2*c + (q >> 1)) * 4 + (q & 1) * 2
            tA, tB = (T[3], T[4]) if k & 1 else (T[5], T[6])
            P(f"v_lshlrev_b32 {tA}, 16, v{src}"); P(f"v_and_b32 {tB}, s{t[5]}, v{src}")
            P(f"v_add_f32 v{d}, v{d}, {tA}"); P(f"v_add_f32 v{d+1}, v{d+1}, {tB}")
    for u in range(3):
        A = OWN + (2*u) * 4; B = OWN + (2*u + 1) * 4
        P(f"v_cvt_pk_bf16_f32 v{A}, v{A}, v{A+1}"); P(f"v_cvt_pk_bf16_f32 v{A+1}, v{A+2}, v{A+3}")
        P(f"v_cvt_pk_bf16_f32 v{B}, v{B}, v{B+1}"); P(f"v_cvt_pk_bf16_f32 v{B+1}, v{B+2}, v{B+3}")
    for u in range(3):
        A = OWN + (2*u) * 4; B = OWN + (2*u + 1) * 4
        P(f"v_permlane32_swap_b32 v{A}, v{B}"); P(f"v_permlane32_swap_b32 v{A+1}, v{B+1}")
    for u in range(3):
        A = OWN + (2*u) * 4; B = OWN + (2*u + 1) * 4
        P(f"v_permlane16_swap_b32 v{A}, v{B}"); P(f"v_permlane16_swap_b32 v{A+1}, v{B+1}")
    for u in range(3):
        A = OWN + (2*u) * 4; B = OWN + (2*u + 1) * 4
        P(f"v_mov_b32 v{A+2}, v{B}"); P(f"v_mov_b32 v{A+3}, v{B+1}")
    for u in range(3):
        A = OWN + (2*u) * 4
        P(f"buffer_store_dwordx4 {vr(A)}, {T[1]}, s[{S_SRDOUT}:{S_SRDOUT+3}], s{t[3]} offen offset:{u*64}")
    if stamps:
        P("s_waitcnt vmcnt(0)")
        stamp()
        P("s_waitcnt lgkmcnt(0)")
        for i in range(8): P(f"v_mov_b32 v{4+i}, s{80+2*min(i, nst[0]-1)}")
        P(f"s_lshl_b32 s{t[0]}, s2, 2"); P(f"s_add_u32 s{t[0]}, s{t[0]}, s{S_W}"); P(f"s_lshl_b32 s{t[0]}, s{t[0]}, 5")
        P(f"s_add_u32 s76, s72, 0x4100000"); P("s_addc_u32 s77, s73, 0"); P("s_mov_b32 s78, 0x100000"); P("s_mov_b32 s79, 0x20000")
        P(f"v_mov_b32 v12, s{t[0]}"); P(f"v_cmp_eq_u32 vcc, 0, {L}"); P("s_and_saveexec_b64 s[74:75], vcc")
        P("buffer_store_dwordx4 v[4:7], v12, s[76:79], 0 offen")
        P("buffer_store_dwordx4 v[8:11], v12, s[76:79], 0 offen offset:16")
    P.label("L_g8_done")
```

```python
from asmlib import *

WREG = 40960
SLOT_K = [0, 16384]
SLOT_V = [8192, 24576]
STG = 16384
CSCALE = 0.08838834764831845 * 1.4426950408889634
BIAS = 7.0

import struct
def f2u(x): return struct.unpack("<I", struct.pack("<f", x))[0]

V_L = 0
V_XA = 1
V_WA = list(range(2, 10))
V_XG = 10
V_WG = [11, 12]
V_KA = list(range(13, 17))
V_KG = list(range(17, 21))
V_VG = [21, 22]
V_T = list(range(23, 32))
V_WG4 = [224, 225, 226, 227]
V_XG5 = [228, 229, 230, 231, 232]
V_XA2 = [1, 233]
KF = 32
S0 = 64
P0 = 104
NM = 124
LL = 144
VF = 164
ONES = 196
ET = 200
ACC = 64
def S(kt, qt): return S0 + (qt * 2 + kt) * 4
def vr(b, n=4): return f"v[{b}:{b+n-1}]"
def ar(b, n=4): return f"a[{b}:{b+n-1}]"
def Oa(dt, qt): return (dt * 5 + qt) * 4
def Qa(qt, s): return 160 + (qt * 4 + s) * 4
def XF(st, qt): return st * 52 + qt * 4
def WF(st, dt): return st * 52 + 20 + dt * 4

S_SRDX, S_SRDW, S_SRDK, S_SRDV, S_SRDO = 4, 8, 12, 16, 20
S_W, S_P, S_B, S_H = 24, 25, 26, 27
S_WB = 28
S_KOFF = 29
S_VOFF = 30
S_XG = [31, 32, 33]
S_XL = [34, 35, 36]
S_WGB = 37
S_WL = 38
S_KX = 39
S_KW = 40
S_T = list(range(41, 56))
S_CNT = 56
S_RET = 58
S_OB = 60
S_C = 61
S_MASK = 62
S_RHO = 63
S_WBH = 31
S_AOFF = 32

class VQ:
    def __init__(self): self.q = []
    def push(self, tag): self.q.append(tag)
    def wait(self, P, tag):
        if tag not in self.q: return None
        idx = max(i for i, t in enumerate(self.q) if t == tag)
        n = len(self.q) - 1 - idx
        assert n <= 63, n
        P(f"s_waitcnt vmcnt({n})")
        self.q = self.q[idx + 1:]
        return n

def gen_k1(P, nt=" nt", name="attn_kernel", stamps=False, opts={}):
    vq = VQ()
    P.raw(f".globl {name}\n.p2align 8\n.type {name},@function\n{name}:")
    P("s_cmp_ge_u32 s2, 256"); P("s_cbranch_scc1 L_k1_done")
    t = S_T
    P(f"s_and_b32 s{t[0]}, s2, 7")
    P(f"s_lshr_b32 s{t[1]}, s2, 3")
    P(f"s_and_b32 s{S_P}, s{t[1]}, 1")
    P(f"s_lshr_b32 s{t[1]}, s{t[1]}, 1")
    P(f"s_mul_i32 s{t[4]}, s{S_P}, 40")
    P(f"s_add_u32 s{t[5]}, s0, s{t[4]}"); P(f"s_addc_u32 s{t[6]}, s1, 0")
    assert t[5] % 2 == 0
    P(f"s_load_dwordx8 s[64:71], s[{t[5]}:{t[6]}], 0")
    P(f"s_load_dwordx2 s[72:73], s[0:1], 96")
    nst = opts.setdefault("_nst", [0])
    def stamp(grp="main"):
        if stamps and (grp == opts.get("stgrp", "main") or (grp == "all3" and opts.get("stgrp") == "all")) and nst[0] < 8:
            P(f"s_memrealtime s[{80+2*nst[0]}:{81+2*nst[0]}]"); nst[0] += 1
            if grp == "clk":
                P(f"s_memtime s[{80+2*nst[0]}:{81+2*nst[0]}]"); nst[0] += 1
    if opts.get("stgrp", "main") not in ("k2", "none"): stamp(opts.get("stgrp", "main"))
    P(f"v_lshrrev_b32 v1, 6, v0"); P(f"v_and_b32 v{V_L}, 63, v0")
    P(f"v_readfirstlane_b32 s{S_W}, v1")
    P(f"s_and_b32 s{t[2]}, s{t[1]}, 3")
    P(f"s_lshr_b32 s{t[3]}, s{t[1]}, 2")
    P(f"s_add_u32 s{t[7]}, s{t[2]}, s{t[3]}"); P(f"s_and_b32 s{S_RHO}, s{t[7]}, 3")
    P(f"s_and_b32 s{t[8]}, s{t[0]}, 3"); P(f"s_lshl_b32 s{t[8]}, s{t[8]}, 2"); P(f"s_add_u32 s{t[2]}, s{t[2]}, s{t[8]}")
    P(f"s_lshr_b32 s{t[8]}, s{t[0]}, 2"); P(f"s_lshl_b32 s{t[8]}, s{t[8]}, 2"); P(f"s_add_u32 s{t[3]}, s{t[3]}, s{t[8]}")
    if opts.get("norot"): P(f"s_mov_b32 s{S_RHO}, 0")
    if opts.get("rotmode") == "xcd":
        k = opts.get("rotk", "x")
        if k == "x": P(f"s_and_b32 s{S_RHO}, s2, 7")
        elif k == "coarse":
            P(f"s_mul_i32 s{S_RHO}, s{S_RHO}, 9"); P(f"s_lshr_b32 s{S_RHO}, s{S_RHO}, 2")
        elif k == "xp":
            P(f"s_and_b32 s{S_RHO}, s2, 7"); P(f"s_mul_i32 s{t[14]}, s{S_P}, 4"); P(f"s_add_u32 s{S_RHO}, s{S_RHO}, s{t[14]}"); P(f"s_cmp_ge_u32 s{S_RHO}, 9"); P(f"s_cselect_b32 s{t[14]}, 9, 0"); P(f"s_sub_u32 s{S_RHO}, s{S_RHO}, s{t[14]}")
        elif k == "half":
            P(f"s_and_b32 s{S_RHO}, s{S_RHO}, 1"); P(f"s_mul_i32 s{S_RHO}, s{S_RHO}, 4"); P(f"s_and_b32 s{t[14]}, s2, 3"); P(f"s_add_u32 s{S_RHO}, s{S_RHO}, s{t[14]}")
    P(f"s_lshr_b32 s{t[8]}, s{S_W}, 1"); P(f"s_lshl_b32 s{S_B}, s{t[3]}, 1"); P(f"s_add_u32 s{S_B}, s{S_B}, s{t[8]}")
    P(f"s_and_b32 s{t[9]}, s{S_W}, 1"); P(f"s_lshl_b32 s{S_H}, s{t[2]}, 1"); P(f"s_add_u32 s{S_H}, s{S_H}, s{t[9]}")
    P(f"s_mul_i32 s{S_WB}, s{S_W}, {WREG}")
    P(f"s_cmp_eq_u32 s{S_P}, 0")
    P(f"s_cselect_b32 s{t[10]}, s{t[2]}, s{S_H}")
    P(f"s_add_u32 s{t[11]}, s{S_P}, 4"); P(f"s_lshl_b32 s{t[11]}, s{S_B}, s{t[11]}")
    P(f"s_add_u32 s{t[10]}, s{t[10]}, s{t[11]}"); P(f"s_lshl_b32 s{S_KOFF}, s{t[10]}, 17")
    P(f"s_mov_b32 s{S_VOFF}, s{S_KOFF}")
    P(f"s_lshl_b32 s{t[12]}, s{t[3]}, 1"); P(f"s_add_u32 s{t[12]}, s{t[12]}, s{t[8]}")
    P(f"s_mul_i32 s{S_XG[0]}, s{t[12]}, {80*1152}"); P(f"s_mul_i32 s{t[13]}, s{t[9]}, {40*1152}"); P(f"s_add_u32 s{S_XG[0]}, s{S_XG[0]}, s{t[13]}")
    P(f"s_add_u32 s{t[11]}, s{t[8]}, 2"); P(f"s_mul_i32 s{t[11]}, s{t[11]}, {WREG}"); P(f"s_mul_i32 s{t[13]}, s{t[9]}, 5120")
    P(f"s_add_u32 s{S_XL[0]}, s{t[11]}, s{t[13]}"); P(f"s_add_u32 s{S_XL[0]}, s{S_XL[0]}, {STG}")
    P(f"s_lshl_b32 s{S_WGB}, s{t[8]}, 17"); P(f"s_lshl_b32 s{t[10]}, s{S_H}, 8"); P(f"s_add_u32 s{S_WGB}, s{S_WGB}, s{t[10]}")
    P(f"s_mul_i32 s{S_WL}, s{t[9]}, {WREG}"); P(f"s_lshl_b32 s{t[10]}, s{t[8]}, 12"); P(f"s_add_u32 s{S_WL}, s{S_WL}, s{t[10]}")
    P(f"s_add_u32 s{S_WL}, s{S_WL}, {STG}")
    P(f"s_lshl_b32 s{S_OB}, s{S_P}, 7"); P(f"s_lshl_b32 s{t[10]}, s{S_H}, 2"); P(f"s_add_u32 s{S_OB}, s{S_OB}, s{t[10]}")
    P(f"s_mul_i32 s{S_OB}, s{S_OB}, 80"); P(f"s_mul_i32 s{t[10]}, s{S_B}, 5"); P(f"s_add_u32 s{S_OB}, s{S_OB}, s{t[10]}")
    P(f"s_lshl_b32 s{S_OB}, s{S_OB}, 10")
    P(f"s_mov_b32 s{S_C}, {f2u(CSCALE):#x}"); P(f"s_mov_b32 s{S_MASK}, 0x40004000")
    L = f"v{V_L}"; T = [f"v{x}" for x in V_T]
    P(f"v_lshrrev_b32 {T[0]}, 3, {L}")
    P(f"v_lshrrev_b32 {T[1]}, 4, {L}")
    P(f"v_and_b32 {T[3]}, 7, {L}"); P(f"v_xor_b32 {T[3]}, {T[3]}, {T[1]}"); P(f"v_lshlrev_b32 {T[3]}, 4, {T[3]}")
    P(f"v_mul_u32_u24 v{V_XG}, 1152, {T[0]}"); P(f"v_add_u32 v{V_XG}, v{V_XG}, {T[3]}")
    P(f"v_and_b32 {T[4]}, 15, {L}")
    P(f"v_lshrrev_b32 {T[5]}, 2, {T[4]}")
    P(f"v_lshrrev_b32 {T[2]}, 1, {T[4]}"); P(f"v_xor_b32 {T[2]}, {T[2]}, {T[1]}"); P(f"v_lshlrev_b32 {T[2]}, 4, {T[2]}")
    P(f"v_lshlrev_b32 v{V_XA2[0]}, 7, {T[4]}"); P(f"v_add_u32 v{V_XA2[0]}, v{V_XA2[0]}, {T[2]}")
    P(f"s_add_u32 s{t[10]}, s{t[8]}, 2"); P(f"s_mul_i32 s{t[10]}, s{t[10]}, {WREG}"); P(f"s_add_u32 s{t[10]}, s{t[10]}, {STG}")
    P(f"v_add_u32 v{V_XA2[0]}, s{t[10]}, v{V_XA2[0]}"); P(f"v_xor_b32 v{V_XA2[1]}, 64, v{V_XA2[0]}")
    P(f"v_lshlrev_b32 {T[2]}, 1, {T[1]}"); P(f"v_xor_b32 {T[2]}, {T[2]}, {T[4]}"); P(f"v_lshlrev_b32 {T[2]}, 4, {T[2]}")
    P(f"v_lshlrev_b32 v{V_WG[0]}, 13, {T[1]}"); P(f"v_add_u32 v{V_WG[0]}, v{V_WG[0]}, {T[2]}")
    P(f"v_xor_b32 v{V_WG[1]}, 0x80, v{V_WG[0]}")
    P(f"v_and_b32 {T[6]}, 3, {L}"); P(f"v_lshlrev_b32 {T[6]}, 3, {T[6]}")
    P(f"v_lshlrev_b32 {T[2]}, 3, {T[1]}"); P(f"v_add_u32 {T[2]}, {T[2]}, {T[5]}"); P(f"v_lshlrev_b32 {T[2]}, 8, {T[2]}")
    P(f"v_and_b32 {T[3]}, 1, {T[1]}"); P(f"v_lshlrev_b32 {T[3]}, 2, {T[3]}"); P(f"v_or_b32 {T[3]}, {T[3]}, {T[5]}"); P(f"v_lshlrev_b32 {T[7]}, 5, {T[3]}")
    P(f"v_add_u32 {T[2]}, {T[2]}, {T[7]}"); P(f"v_add_u32 {T[2]}, {T[2]}, {T[6]}")
    P(f"s_mul_i32 s{t[10]}, s{t[9]}, {WREG}"); P(f"s_add_u32 s{t[10]}, s{t[10]}, {STG}")
    P(f"v_add_u32 v{V_WA[0]}, s{t[10]}, {T[2]}")
    for dt in range(1, 8): P(f"v_xor_b32 v{V_WA[dt]}, {dt*32}, v{V_WA[0]}")
    P(f"v_xor_b32 {T[2]}, {T[4]}, {T[1]}"); P(f"v_lshlrev_b32 {T[2]}, 4, {T[2]}")
    P(f"v_lshlrev_b32 {T[3]}, 8, {T[1]}"); P(f"v_add_u32 v{V_KG[0]}, {T[3]}, {T[2]}")
    for v in range(1, 4): P(f"v_xor_b32 v{V_KG[v]}, {64*v}, v{V_KG[0]}")
    P(f"v_lshlrev_b32 {T[7]}, 8, {T[4]}"); P(f"v_add_u32 {T[7]}, {T[7]}, {T[2]}"); P(f"v_add_u32 v{V_KA[0]}, s{S_WB}, {T[7]}")
    for s in range(1, 4): P(f"v_xor_b32 v{V_KA[s]}, {64*s}, v{V_KA[0]}")
    P(f"v_lshlrev_b32 {T[2]}, 1, {T[1]}"); P(f"v_xor_b32 {T[2]}, {T[2]}, {T[4]}"); P(f"v_lshlrev_b32 {T[2]}, 4, {T[2]}")
    P(f"v_add_u32 v{V_VG[0]}, {T[3]}, {T[2]}"); P(f"v_xor_b32 v{V_VG[1]}, 0x80, v{V_VG[0]}")
    P(f"v_lshlrev_b32 {T[2]}, 2, {T[1]}"); P(f"v_add_u32 {T[2]}, {T[2]}, {T[5]}"); P(f"v_and_b32 {T[3]}, 7, {T[2]}")
    P(f"v_lshlrev_b32 {T[2]}, 8, {T[2]}"); P(f"v_lshlrev_b32 {T[3]}, 5, {T[3]}"); P(f"v_add_u32 {T[2]}, {T[2]}, {T[3]}")
    P(f"v_add_u32 {T[2]}, {T[2]}, {T[6]}"); P(f"v_add_u32 {T[8]}, s{S_WB}, {T[2]}")
    for u in range(4):
        P(f"s_add_u32 s{t[10]}, s{S_WGB}, {u*32768}"); P(f"v_add_u32 v{V_WG4[u]}, s{t[10]}, v{V_WG[u>>1]}")
    for u in range(5):
        P(f"s_add_u32 s{t[10]}, s{t[9]}, {u}"); P(f"s_and_b32 s{t[10]}, s{t[10]}, 1"); P(f"s_lshl_b32 s{t[10]}, s{t[10]}, 6")
        P(f"v_xor_b32 v{V_XG5[u]}, s{t[10]}, v{V_XG}")
        P(f"s_add_u32 s{t[10]}, s{S_XG[0]}, {u*8*1152}"); P(f"v_add_u32 v{V_XG5[u]}, s{t[10]}, v{V_XG5[u]}")
    stamp("pro")
    P("s_waitcnt lgkmcnt(0)")
    stamp("pro")
    P(f"s_mov_b32 s{S_SRDX}, s64"); P(f"s_mov_b32 s{S_SRDX+1}, s65"); P(f"s_mov_b32 s{S_SRDX+2}, {16*80*1152}"); P(f"s_mov_b32 s{S_SRDX+3}, 0x20000")
    P(f"s_mov_b32 s{S_SRDW}, s70"); P(f"s_mov_b32 s{S_SRDW+1}, s71"); P(f"s_mov_b32 s{S_SRDW+2}, {576*8192}"); P(f"s_mov_b32 s{S_SRDW+3}, 0x20000")
    P(f"s_add_u32 s{t[10]}, s{S_P}, 25"); P(f"s_lshl_b32 s{t[10]}, 1, s{t[10]}")
    P(f"s_mov_b32 s{S_SRDK}, s66"); P(f"s_mov_b32 s{S_SRDK+1}, s67"); P(f"s_mov_b32 s{S_SRDK+2}, s{t[10]}"); P(f"s_mov_b32 s{S_SRDK+3}, 0x20000")
    P(f"s_mov_b32 s{S_SRDV}, s68"); P(f"s_mov_b32 s{S_SRDV+1}, s69"); P(f"s_mov_b32 s{S_SRDV+2}, s{t[10]}"); P(f"s_mov_b32 s{S_SRDV+3}, 0x20000")
    P(f"s_mov_b32 s{S_SRDO}, s72"); P(f"s_mov_b32 s{S_SRDO+1}, s73"); P(f"s_mov_b32 s{S_SRDO+2}, {2*80*128*1024}"); P(f"s_mov_b32 s{S_SRDO+3}, 0x20000")

    def dcalc(tau, dst, sh):
        if opts.get("rotmode", "fine") == "xcd":
            return [[f"s_add_u32 s{dst}, s{S_RHO}, {tau}", f"s_cmp_ge_u32 s{dst}, 9", f"s_cselect_b32 s{t[14]}, 9, 0", f"s_sub_u32 s{dst}, s{dst}, s{t[14]}"], f"s_lshl_b32 s{dst}, s{dst}, {sh}"]
        if tau == 8: return [f"s_mov_b32 s{dst}, {8 << sh}"]
        m, r = tau >> 2, tau & 3
        return [[f"s_add_u32 s{dst}, s{S_RHO}, {r}", f"s_and_b32 s{dst}, s{dst}, 3", f"s_add_u32 s{dst}, s{dst}, {4*m}", f"s_lshl_b32 s{dst}, s{dst}, {sh}"]]
    def dma_w(st_idx):
        buf = st_idx % 3
        out = []; tag = f"W{st_idx}"
        def dm(txt):
            def f(): P(txt); vq.push(tag)
            return f
        if st_idx % 2 == 0: out += dcalc(st_idx >> 1, S_KW, 19)
        else: out.append(f"s_add_u32 s{S_KW}, s{S_KW}, 0x40000")
        for u in range(4):
            out.append(f"s_add_u32 m0, s{S_WL}, {buf*8192 + u*1024}")
            out.append(dm(f"buffer_load_dwordx4 v{V_WG4[u]}, s[{S_SRDW}:{S_SRDW+3}], s{S_KW} offen{opts.get('wfl','').replace('_',' ')} lds"))
        return out
    def dma_x(D):
        bx = (D + 1) & 1
        out = []; tag = f"X{D}"
        def dm(txt):
            def f(): P(txt); vq.push(tag)
            return f
        out += dcalc(D, S_KX, 7)
        for u in range(5):
            out.append(f"s_add_u32 m0, s{S_XL[0]}, {bx*10240 + u*1024}")
            out.append(dm(f"buffer_load_dwordx4 v{V_XG5[u]}, s[{S_SRDX}:{S_SRDX+3}], s{S_KX} offen{opts.get('xfl','').replace('_',' ')} lds"))
        return out
    thr = [None]
    def dma_kv(which, blk, slot):
        out = []
        srd = S_SRDK if which == "K" else S_SRDV
        off = S_KOFF if which == "K" else S_VOFF
        tag = f"{which}{blk}"
        def dm(txt):
            def f(): P(txt); vq.push(tag)
            return f
        for i in range(8):
            if i % 4 == 0:
                if i == 4: out.append(f"s_add_u32 s{off}, s{off}, 4096")
                out.append(f"s_add_u32 m0, s{S_WB}, {slot + (i>>2)*4096}")
            vg = V_KG[i & 3] if which == "K" else V_VG[i & 1]
            o = f" offset:{(i&3)*1024}" if i & 3 else ""
            if thr[0] is not None: out.append(f"s_waitcnt vmcnt({thr[0]})")
            out.append(dm(f"buffer_load_dwordx4 v{vg}, s[{srd}:{srd+3}], s{off} offen{o}{nt} lds"))
        out.append(f"s_add_u32 s{off}, s{off}, 4096")
        return out
    def dma_kv_half(which, blk, slot):
        out = []
        srd = S_SRDK if which == "K" else S_SRDV
        off = S_KOFF if which == "K" else S_VOFF
        tag = f"{which}{blk}"
        def dm(txt):
            def f(): P(txt); vq.push(tag)
            return f
        out.append(f"s_add_u32 m0, s{S_WBH}, {slot}")
        for i in range(4):
            vg = V_KG[i & 3] if which == "K" else V_VG[i & 1]
            o = f" offset:{i*1024}" if i else ""
            out.append(dm(f"buffer_load_dwordx4 v{vg}, s[{srd}:{srd+3}], s{off} offen{o}{nt} lds"))
        out.append(f"s_add_u32 s{off}, s{off}, 8192")
        return out
    def run(l):
        for x in l:
            if callable(x): x()
            elif isinstance(x, list): run(x)
            else: P(x)
    def rd_stage(st_idx):
        buf = st_idx % 3; fs = st_idx & 1; D = st_idx >> 1; bx = (D + 1) & 1; hf = st_idx & 1
        out = []
        for qt in range(5):
            out.append(f"ds_read_b128 {ar(XF(fs, qt))}, v{V_XA2[hf]} offset:{bx*10240 + qt*2048}")
        for dt in range(8):
            out.append(f"ds_read_b64_tr_b16 {ar(WF(fs, dt), 2)}, v{V_WA[dt]} offset:{buf*8192}")
            out.append(f"ds_read_b64_tr_b16 {ar(WF(fs, dt)+2, 2)}, v{V_WA[dt]} offset:{buf*8192 + 1024}")
        return [out[0], out[5], out[6]] + out[1:5] + out[7:]

    if opts.get("g2"):
        P("s_cmp_lg_u32 s2, 0"); P("s_cbranch_scc1 L_k1_nononce"); P(f"s_cmp_lg_u32 s{S_W}, 0"); P("s_cbranch_scc1 L_k1_nononce")
        P("s_load_dwordx2 s[74:75], s[0:1], 88"); P("s_memrealtime s[76:77]"); P("s_waitcnt lgkmcnt(0)")
        P("s_or_b32 s76, s76, 1"); P("v_mov_b32 v234, s76"); P("v_mov_b32 v235, 0")
        P("s_mov_b32 s76, s74"); P("s_mov_b32 s77, s75"); P("s_mov_b32 s78, 256"); P("s_mov_b32 s79, 0x20000")
        P(f"v_cmp_eq_u32 vcc, 0, {L}"); P("s_and_saveexec_b64 s[74:75], vcc")
        P("buffer_store_dword v234, v235, s[76:79], 0 offen sc1")
        P("s_waitcnt vmcnt(0)")
        P("s_mov_b64 exec, s[74:75]")
        P.label("L_k1_nononce")
    P.c("phase 1 prologue")
    run(dma_x(0)); run(dma_w(0)); stamp("pro"); run(dma_w(1)); run(dma_x(1)); stamp("pro")
    kstep = int(opts.get("k0step", 5)); vstep = int(opts.get("v0step", 8))
    stamp("p1")
    vq.wait(P, "W0"); stamp("pro"); P("s_barrier")
    stamp("p1"); stamp("pro")
    run(rd_stage(0))
    NS = 18
    pf_cache = {}
    for st in range(NS):
        P.c(f"Q-proj step {st}")
        fs = st & 1
        mf = []
        for dt in range(8):
            for qt in range(5):
                a = ACC + (dt * 5 + qt) * 4
                c = "0" if st == 0 else vr(a)
                mf.append(f"v_mfma_f32_16x16x32_bf16 {vr(a)}, {ar(WF(fs, dt))}, {ar(XF(fs, qt))}, {c}")
        P("s_waitcnt lgkmcnt(0)")
        head = int(opts.get('head', 6))
        for m in mf[:head]: P(m)
        fill = []
        if st + 1 < NS:
            need_tags = [f"W{st+1}"] + ([f"X{(st+1)>>1}"] if (st + 1) % 2 == 0 else [])
            last = max(need_tags, key=lambda tg: max([i for i, x in enumerate(vq.q) if x == tg], default=-1))
            if not opts.get("nowait1"): vq.wait(P, last)
        if not opts.get("nobar1"): P("s_barrier")
        dm = []
        if st == 0: dm += dma_w(2)
        if st + 3 < NS and not opts.get("nodmaW"): dm += dma_w(st + 3)
        if st % 2 == 1 and (st + 3) // 2 < 9 and not opts.get("nodmaX"): dm += dma_x((st + 3) // 2)
        if not opts.get("nokv1"):
            sched = opts.get("pf", "5:K0a,5:K0b,8:V0a,8:V0b")
            for ev in sched.split(","):
                es, what = ev.split(":")
                if int(es) == st:
                    which, half = what[0], what[2]
                    key = what[:2]
                    if key not in pf_cache: pf_cache[key] = dma_kv(which, 0, SLOT_K[0] if which == "K" else SLOT_V[0])
                    atoms = pf_cache[key]
                    dm += atoms[:5] if half == "a" else atoms[5:]
            if st == 15: dm += dma_kv("K", 1, SLOT_K[1])
            if st == 17: dm += dma_kv("V", 1, SLOT_V[1])
        rd = rd_stage(st + 1) if st + 1 < NS else []
        if opts.get("nord1"): rd = []
        fill = []
        nd, nr = len(dm), len(rd)
        di = ri = 0
        rr = int(opts.get("rratio", 2))
        while di < nd or ri < nr:
            for _ in range(rr):
                if ri < nr: fill.append(rd[ri]); ri += 1
            if di < nd: fill.append(dm[di]); di += 1
        interleave(P, mf[head:], fill)
        if st in (0, 1, 2, 8, 17): stamp("p1")
        if st in tuple(int(x) for x in opts.get("p2steps", "8.9.10.11.12.13.14").split(".")): stamp("p2")
        if st in tuple(int(x) for x in opts.get("clksteps", "9.14").split(".")): stamp("clk")
    stamp(); stamp("all3")
    if opts.get("p1only"):
        P("s_waitcnt vmcnt(0)"); P("s_endpgm")
    P.c("Q conversion")
    for dt in range(8): P(f"v_xor_b32 v{V_WA[dt]}, {dt*32}, {T[8]}") if dt else P(f"v_mov_b32 v{V_WA[0]}, {T[8]}")
    for qt in range(5):
        for s in range(4):
            A = ACC + ((2 * s) * 5 + qt) * 4; B = ACC + ((2 * s + 1) * 5 + qt) * 4
            for r in range(4): P(f"v_mul_f32 v{A+r}, s{S_C}, v{A+r}")
            for r in range(4): P(f"v_mul_f32 v{B+r}, s{S_C}, v{B+r}")
            P(f"v_cvt_pk_bf16_f32 v{A}, v{A}, v{A+1}"); P(f"v_cvt_pk_bf16_f32 v{A+1}, v{A+2}, v{A+3}")
            P(f"v_cvt_pk_bf16_f32 v{B}, v{B}, v{B+1}"); P(f"v_cvt_pk_bf16_f32 v{B+1}, v{B+2}, v{B+3}")
    for qt in range(5):
        for s in range(4):
            A = ACC + ((2 * s) * 5 + qt) * 4; B = ACC + ((2 * s + 1) * 5 + qt) * 4
            P(f"v_permlane32_swap_b32 v{A}, v{B}"); P(f"v_permlane32_swap_b32 v{A+1}, v{B+1}")
    for qt in range(5):
        for s in range(4):
            A = ACC + ((2 * s) * 5 + qt) * 4; B = ACC + ((2 * s + 1) * 5 + qt) * 4
            P(f"v_permlane16_swap_b32 v{A}, v{B}"); P(f"v_permlane16_swap_b32 v{A+1}, v{B+1}")
    for qt in range(5):
        for s in range(4):
            A = ACC + ((2 * s) * 5 + qt) * 4; B = ACC + ((2 * s + 1) * 5 + qt) * 4
            q = Qa(qt, s)
            P(f"v_accvgpr_write_b32 a{q}, v{A}"); P(f"v_accvgpr_write_b32 a{q+1}, v{A+1}")
            P(f"v_accvgpr_write_b32 a{q+2}, v{B}"); P(f"v_accvgpr_write_b32 a{q+3}, v{B+1}")
    for r in range(4): P(f"v_mov_b32 v{ONES+r}, 0x3f803f80")

    def rd_K(slot):
        return [f"ds_read_b128 {vr(KF + (kt*4+s)*4)}, v{V_KA[s]} offset:{slot + kt*4096}" for kt in range(2) for s in range(4)]
    def rd_V(slot):
        out = []
        for dt in range(8):
            out.append(f"ds_read_b64_tr_b16 {vr(VF + dt*4, 2)}, v{V_WA[dt]} offset:{slot}")
            out.append(f"ds_read_b64_tr_b16 {vr(VF + dt*4 + 2, 2)}, v{V_WA[dt]} offset:{slot + 4096}")
        return out
    def qk_mfmas(qt, first):
        out = []
        for kt in range(2):
            for s in range(4):
                d = S(kt, qt)
                c = (("0" if first else vr(NM + qt * 4)) if s == 0 else vr(d))
                out.append(f"v_mfma_f32_16x16x32_bf16 {vr(d)}, {vr(KF + (kt*4+s)*4)}, {ar(Qa(qt, s))}, {c}")
        return out
    def softmax_ops(qt, orreg, first_or):
        e = ET + (qt & 1) * 8
        out = []
        for kt in range(2):
            for r in range(4): out.append(f"v_exp_f32 v{e + kt*4 + r}, v{S(kt, qt) + r}")
            out.append(f"v_cvt_pk_bf16_f32 v{P0 + qt*4 + kt*2}, v{e + kt*4}, v{e + kt*4 + 1}")
            out.append(f"v_cvt_pk_bf16_f32 v{P0 + qt*4 + kt*2 + 1}, v{e + kt*4 + 2}, v{e + kt*4 + 3}")
        o = [out[0], out[1], out[2], out[3], out[6], out[4], out[7], out[5], out[8], out[9], out[10], out[11]]
        p = P0 + qt * 4
        if first_or:
            o.append(f"v_or3_b32 {orreg}, v{p}, v{p+1}, v{p+2}"); o.append(f"v_or_b32 {orreg}, {orreg}, v{p+3}")
        else:
            o.append(f"v_or3_b32 {orreg}, {orreg}, v{p}, v{p+1}"); o.append(f"v_or3_b32 {orreg}, {orreg}, v{p+2}, v{p+3}")
        return o
    def colmax(qt, dst, tmp):
        a = S(0, qt); b = S(1, qt)
        P(f"v_max3_f32 {dst}, v{a}, v{a+1}, v{a+2}"); P(f"v_max3_f32 {tmp}, v{a+3}, v{b}, v{b+1}")
        P(f"v_max3_f32 {dst}, {dst}, v{b+2}, v{b+3}"); P(f"v_max_f32 {dst}, {dst}, {tmp}")
        P(f"v_mov_b32 {tmp}, {dst}"); P(f"v_permlane32_swap_b32 {dst}, {tmp}"); P(f"v_max_f32 {dst}, {dst}, {tmp}")
        P(f"v_mov_b32 {tmp}, {dst}"); P(f"v_permlane16_swap_b32 {dst}, {tmp}"); P(f"v_max_f32 {dst}, {dst}, {tmp}")
    ORR = T[0]
    def merge(a, b):
        out = []; i = j = 0
        while i < len(a) or j < len(b):
            if i < len(a) and (j >= len(b) or i * max(len(b), 1) <= j * len(a)): out.append(a[i]); i += 1
            else: out.append(b[j]); j += 1
        return out
    def block(i, first=False, issue=True, last=False, shared=False, lab=""):
        par = i & 1
        dk = dma_kv_half if shared else dma_kv
        pre = "A" if shared else ""
        P.c(f"block {i} QK {pre}")
        P("s_waitcnt lgkmcnt(0)")
        if not shared and opts.get("blkbar"): P("s_barrier")
        if shared:
            vq.wait(P, f"V{i}"); P("s_barrier")
            if i == 1:
                for x in range(4): P(f"v_subrev_u32 v{V_KA[x]}, s{S_AOFF}, v{V_KA[x]}")
        dmK = dk("K", i + 2, SLOT_K[par]) if issue else []
        rdV = rd_V(SLOT_V[par])
        waitV = (lambda: None) if shared else (lambda: vq.wait(P, f"V{i}"))
        nk = 3 if shared else 6
        for qt in range(5):
            fill = []
            if not first and qt > 0: fill += softmax_ops(qt - 1, ORR, qt == 1)
            if qt == 0: fill += dmK[:nk]
            if qt == 1: fill = merge(fill, dmK[nk:])
            if qt == 3: fill = [waitV] + merge(fill, rdV[:8])
            if qt == 4: fill = merge(fill, rdV[8:])
            interleave(P, qk_mfmas(qt, first), fill)
        if first:
            P.c("first block: establish the running max")
            for qt in range(5):
                colmax(qt, T[1], T[2])
                P(f"v_add_f32 {T[1]}, 0x{f2u(BIAS):x}, {T[1]}")
                for r in range(4): P(f"v_sub_f32 v{NM + qt*4 + r}, 0, {T[1]}")
                for kt in range(2):
                    for r in range(4): P(f"v_sub_f32 v{S(kt, qt) + r}, v{S(kt, qt) + r}, {T[1]}")
                run(softmax_ops(qt, ORR, qt == 0))
        else:
            run(softmax_ops(4, ORR, False))
            P(f"v_and_b32 {ORR}, s{S_MASK}, {ORR}")
            P(f"v_cmp_ne_u32 vcc, 0, {ORR}")
            lb = f"L_ok_{pre}{lab}{i}"
            P(f"s_cbranch_vccz {lb}")
            P(f"s_call_b64 s[{S_RET}:{S_RET+1}], L_rescale")
            P.label(lb)
        P.c(f"block {i} PV {pre}")
        P("s_waitcnt lgkmcnt(0)")
        if not shared and opts.get("blkbar") == "2": P("s_barrier")
        if shared:
            if not last: vq.wait(P, f"K{i+1}")
            P("s_barrier")
            if i == 1:
                for x in range(8): P(f"v_subrev_u32 v{V_WA[x]}, s{S_AOFF}, v{V_WA[x]}")
        dmV = dk("V", i + 2, SLOT_V[par]) if issue else []
        mf = []
        for qt in range(5):
            for dt in range(8):
                o = Oa(dt, qt)
                c = "0" if first else ar(o)
                mf.append(f"v_mfma_f32_16x16x32_bf16 {ar(o)}, {vr(VF + dt*4)}, {vr(P0 + qt*4)}, {c}")
            c = "0" if first else vr(LL + qt * 4)
            mf.append(f"v_mfma_f32_16x16x32_bf16 {vr(LL + qt*4)}, {vr(ONES)}, {vr(P0 + qt*4)}, {c}")
        fill = list(dmV)
        tail = []
        if not last:
            tail = ([] if shared else [lambda: vq.wait(P, f"K{i+1}")]) + rd_K(SLOT_K[(i + 1) & 1])
        interleave(P, mf[:27], fill)
        interleave(P, mf[27:], tail)

    def shape(q, base): return [(x[0], int(x[1:]) - base) for x in q]
    def attention(shared):
        pre = "A" if shared else ""
        stamp()
        vq.wait(P, "K0"); run(rd_K(SLOT_K[0]))
        if shared:
            P(f"s_and_b32 s{t[0]}, s{S_W}, 1"); P(f"s_mul_i32 s{S_AOFF}, s{t[0]}, {WREG}"); P(f"s_lshl_b32 s{t[0]}, s{t[0]}, 12")
            P(f"s_sub_u32 s{S_WBH}, s{S_WB}, s{S_AOFF}"); P(f"s_add_u32 s{S_WBH}, s{S_WBH}, s{t[0]}")
            P(f"s_add_u32 s{S_KOFF}, s{S_KOFF}, s{t[0]}"); P(f"s_add_u32 s{S_VOFF}, s{S_VOFF}, s{t[0]}")
        nthr = int(opts.get("bthr", 0)) if not shared else 0
        if nthr: thr[0] = int(opts.get("thrn", 3))
        block(0, first=True, shared=shared)
        stamp()
        block(1, shared=shared)
        stamp()
        P(f"s_mov_b32 s{S_CNT}, 0")
        qsave = [x for x in vq.q]
        if nthr:
            P.label(f"L_attn_loopT")
            block(2, shared=shared, lab="T"); block(3, shared=shared, lab="T")
            assert shape(qsave, 2) == shape(vq.q, 4), (qsave, vq.q)
            P(f"s_add_u32 s{S_CNT}, s{S_CNT}, 1"); P(f"s_cmp_lt_u32 s{S_CNT}, {nthr}"); P(f"s_cbranch_scc1 L_attn_loopT")
            vq.q = list(qsave); thr[0] = None
        if opts.get("align"): P.raw(".p2align 6")
        P.label(f"L_attn_loop{pre}")
        block(2, shared=shared); block(3, shared=shared)
        assert shape(qsave, 2) == shape(vq.q, 4), (qsave, vq.q)
        P(f"s_add_u32 s{S_CNT}, s{S_CNT}, 1"); P(f"s_cmp_lt_u32 s{S_CNT}, 6"); P(f"s_cbranch_scc1 L_attn_loop{pre}")
        vq.q = [f"{x[0]}{int(x[1:]) - 4 + 14}" for x in vq.q]
        if opts.get("g2"):
            P("s_load_dwordx2 s[74:75], s[0:1], 88")
            P(f"v_mov_b32 v235, 0")
            P("s_waitcnt lgkmcnt(0)")
            P("s_mov_b32 s76, s74"); P("s_mov_b32 s77, s75"); P("s_mov_b32 s78, 256"); P("s_mov_b32 s79, 0x20000")
            P("buffer_load_dword v234, v235, s[76:79], 0 offen sc1"); vq.push("T0")
        block(14, issue=False, shared=shared); block(15, issue=False, last=True, shared=shared)
    if opts.get("shareA"):
        q_at = list(vq.q); n_at = nst[0]
        P(f"s_cmp_eq_u32 s{S_P}, 0"); P("s_cbranch_scc1 L_attn_A")
        attention(False)
        P("s_branch L_epi")
        P.label("L_attn_A")
        vq.q = list(q_at); nst[0] = n_at
        attention(True)
        P.label("L_epi")
    else:
        attention(False)
    stamp(); stamp("clk"); stamp("all3")
    P.c("epilogue")
    for qt in range(5): P(f"v_rcp_f32 v{NM + qt}, v{LL + qt*4}")
    P(f"v_lshlrev_b32 {T[0]}, 4, {L}")
    n = 0
    for qt in range(5):
        for s in range(4):
            e = S0 + (n % 4) * 8; n += 1
            P(f"s_add_u32 s{t[0]}, s{S_OB}, {s*81920 + qt*1024}")
            for r in range(4): P(f"v_accvgpr_read_b32 v{e+r}, a{Oa(2*s, qt)+r}")
            for r in range(4): P(f"v_accvgpr_read_b32 v{e+4+r}, a{Oa(2*s+1, qt)+r}")
            for r in range(8): P(f"v_mul_f32 v{e+r}, v{e+r}, v{NM+qt}")
            P(f"v_cvt_pk_bf16_f32 v{e}, v{e}, v{e+1}"); P(f"v_cvt_pk_bf16_f32 v{e+1}, v{e+2}, v{e+3}")
            P(f"v_cvt_pk_bf16_f32 v{e+2}, v{e+4}, v{e+5}"); P(f"v_cvt_pk_bf16_f32 v{e+3}, v{e+6}, v{e+7}")
            P(f"buffer_store_dwordx4 {vr(e)}, {T[0]}, s[{S_SRDO}:{S_SRDO+3}], s{t[0]} offen{' sc1' if (opts.get('merge') or opts.get('g2')) else opts.get('ost', '').replace('_', ' ')}")
    if stamps and nst[0] > 0 and opts.get("stgrp") != "all":
        P("s_waitcnt vmcnt(0)")
        stamp()
        P("s_waitcnt lgkmcnt(0)")
        for i in range(8): P(f"v_mov_b32 v{4+i}, s{80+2*min(i, nst[0]-1)}")
        P(f"s_lshl_b32 s{t[0]}, s2, 2"); P(f"s_add_u32 s{t[0]}, s{t[0]}, s{S_W}"); P(f"s_lshl_b32 s{t[0]}, s{t[0]}, 5")
        P(f"s_add_u32 s76, s72, 0x4000000"); P("s_addc_u32 s77, s73, 0"); P("s_mov_b32 s78, 0x100000"); P("s_mov_b32 s79, 0x20000")
        P(f"v_mov_b32 v12, s{t[0]}"); P(f"v_cmp_eq_u32 vcc, 0, {L}"); P("s_and_saveexec_b64 s[74:75], vcc")
        P("buffer_store_dwordx4 v[4:7], v12, s[76:79], 0 offen")
        P("buffer_store_dwordx4 v[8:11], v12, s[76:79], 0 offen offset:16")
        P("s_mov_b64 exec, s[74:75]")
    if opts.get("g8"):
        import g8
        g8.gen_g8(P, opts, {"P": S_P, "B": S_B, "H": S_H})
    elif opts.get("g2"):
        import g2
        g2.gen_g2(P, opts, {"P": S_P, "B": S_B, "H": S_H})
    elif opts.get("merge"):
        import k2
        P(f"s_lshl_b32 s{t[0]}, s{S_P}, 5"); P(f"s_lshr_b32 s{t[1]}, s{S_B}, 1"); P(f"s_lshl_b32 s{t[1]}, s{t[1]}, 2"); P(f"s_add_u32 s{t[0]}, s{t[0]}, s{t[1]}")
        P(f"s_lshr_b32 s{t[1]}, s{S_H}, 3"); P(f"s_add_u32 s{t[0]}, s{t[0]}, s{t[1]}"); P(f"s_lshl_b32 s{t[0]}, s{t[0]}, 2")
        P("s_load_dwordx2 s[70:71], s[0:1], 88")
        P("s_waitcnt vmcnt(0) lgkmcnt(0)"); P("s_barrier")
        P(f"s_cmp_lg_u32 s{S_W}, 0"); P("s_cbranch_scc1 L_k1_sig")
        P("s_mov_b32 s20, s70"); P("s_mov_b32 s21, s71"); P("s_mov_b32 s22, 256"); P("s_mov_b32 s23, 0x20000")
        P(f"v_mov_b32 {T[1]}, s{t[0]}"); P(f"v_mov_b32 {T[2]}, 1")
        P(f"v_cmp_eq_u32 vcc, 0, {L}"); P("s_and_saveexec_b64 s[74:75], vcc")
        P(f"buffer_atomic_add {T[2]}, {T[1]}, s[20:23], 0 offen")
        P("s_mov_b64 exec, s[74:75]")
        P.label("L_k1_sig")
        k2.gen_k2(P, opts, merged=True)
    P.label("L_k1_done")
    P("s_endpgm")
    P.label("L_rescale")
    P("s_nop 7"); P("s_nop 7")
    for qt in range(5):
        colmax(qt, T[1], T[2])
        P(f"v_add_f32 {T[1]}, 0x{f2u(BIAS):x}, {T[1]}"); P(f"v_max_f32 {T[1]}, 0, {T[1]}")
        P(f"v_sub_f32 {T[2]}, 0, {T[1]}"); P(f"v_exp_f32 {T[2]}, {T[2]}")
        for r in range(4): P(f"v_sub_f32 v{NM + qt*4 + r}, v{NM + qt*4 + r}, {T[1]}")
        for kt in range(2):
            for r in range(4): P(f"v_sub_f32 v{S(kt, qt) + r}, v{S(kt, qt) + r}, {T[1]}")
        for r in range(4): P(f"v_mul_f32 v{LL + qt*4 + r}, v{LL + qt*4 + r}, {T[2]}")
        for dt in range(8):
            for r in range(4): P(f"v_accvgpr_read_b32 v{ET + r}, a{Oa(dt, qt) + r}")
            for r in range(4): P(f"v_mul_f32 v{ET + r}, v{ET + r}, {T[2]}")
            for r in range(4): P(f"v_accvgpr_write_b32 a{Oa(dt, qt) + r}, v{ET + r}")
        run(softmax_ops(qt, ORR, True))
    P("s_nop 7")
    P(f"s_setpc_b64 s[{S_RET}:{S_RET+1}]")

def desc(name, vgpr, accum, sgpr=100):
    return f""".section .rodata,"a"
.p2align 6
.amdhsa_kernel {name}
  .amdhsa_next_free_vgpr {vgpr}
  .amdhsa_next_free_sgpr {sgpr}
  .amdhsa_accum_offset {accum}
  .amdhsa_group_segment_fixed_size 0
  .amdhsa_kernarg_size 104
  .amdhsa_user_sgpr_count 2
  .amdhsa_user_sgpr_kernarg_segment_ptr 1
  .amdhsa_system_sgpr_workgroup_id_x 1
.end_amdhsa_kernel
"""
```

```python
from asmlib import *
from k1 import vr, ar, VQ, f2u
import k2
from k2 import NBUF, OST, WST, WBASE, EX_OFF, ACC, BF, AF, V_OA, V_WA, V_OG, V_WG, V_T, A_, BFr, AFr

S_SRDO, S_SRDW, S_SRDX, S_SRDOUT, S_SRDD = 4, 8, 12, 16, 20
S_W, S_P, S_KQ, S_MT, S_N3 = 24, 25, 26, 27, 28
S_OG0 = 29
S_KSC, S_KWC, S_KSN, S_KWN = 30, 31, 32, 33
S_WGB = 34
S_DONE = 35
S_TK = 36
S_SEG = 37
S_OL, S_WL = 38, 39
S_NONCE = 66
S_T = list(range(40, 56))
FLAG_OFF = 0x3000000
SEL = 81920 + 64

def gen_g2(P, opts, S1):
    stamps = opts.get("stamps", False) and opts.get("stgrp") in ("k2", "all")
    nst = opts.setdefault("_nst", [0])
    def stamp():
        if stamps and nst[0] < 8:
            P(f"s_memrealtime s[{80+2*nst[0]}:{81+2*nst[0]}]"); nst[0] += 1
    vq = VQ(); t = S_T
    T = [f"v{x}" for x in V_T]; L = "v0"
    P(f"s_lshl_b32 s{t[0]}, s{S1['P']}, 3"); P(f"s_lshr_b32 s{t[1]}, s{S1['B']}, 1"); P(f"s_add_u32 s{t[0]}, s{t[0]}, s{t[1]}"); P(f"s_lshl_b32 s{t[0]}, s{t[0]}, 4")
    P(f"s_lshr_b32 s{t[1]}, s{S1['H']}, 1"); P(f"s_add_u32 s{t[0]}, s{t[0]}, s{t[1]}"); P(f"s_lshl_b32 s67, s{t[0]}, 7")
    P("s_load_dwordx4 s[68:71], s[0:1], 80")
    P("s_load_dwordx2 s[72:73], s[0:1], 96")
    P(f"s_and_b32 s{t[2]}, s2, 7"); P(f"s_lshr_b32 s{S_P}, s{t[2]}, 2"); P(f"s_and_b32 s{S_KQ}, s{t[2]}, 3")
    P(f"s_mul_i32 s{t[4]}, s{S_P}, 40"); P(f"s_add_u32 s{t[6]}, s0, s{t[4]}"); P(f"s_addc_u32 s{t[7]}, s1, 0")
    P(f"s_load_dwordx2 s[64:65], s[{t[6]}:{t[7]}], 32")
    if opts.get("tickets"):
        P(f"v_mov_b32 {T[10]}, {32768 + 64}")
        P(f"s_cmp_lg_u32 s{S_W}, 0"); P("s_cbranch_scc1 L_g2_tk")
        P("s_waitcnt vmcnt(20)")
        P(f"s_mov_b32 s{t[5]}, 0")
        P.label("L_g2_nonce0")
        P(f"v_readfirstlane_b32 s{S_NONCE}, v234")
        P(f"s_cmp_lg_u32 s{S_NONCE}, 0"); P("s_cbranch_scc1 L_g2_nonce0_ok")
        P(f"buffer_load_dword v234, v235, s[76:79], 0 offen sc1"); P("s_waitcnt vmcnt(0)")
        P(f"s_add_u32 s{t[5]}, s{t[5]}, 1"); P(f"s_cmp_lt_u32 s{t[5]}, 400000"); P("s_cbranch_scc1 L_g2_nonce0")
        P.label("L_g2_nonce0_ok")
        P(f"v_cmp_eq_u32 vcc, 0, {L}"); P("s_and_saveexec_b64 s[74:75], vcc")
        P(f"ds_write_b32 {T[10]}, v236"); P(f"ds_write_b32 {T[10]}, v234 offset:4"); P("s_waitcnt lgkmcnt(0)")
        P("s_mov_b64 exec, s[74:75]")
        P.label("L_g2_tk")
        P("s_barrier")
        P(f"ds_read_b32 {T[9]}, {T[10]}"); P(f"ds_read_b32 v234, {T[10]} offset:4"); P("s_waitcnt lgkmcnt(0)")
        P(f"v_readfirstlane_b32 s{S_TK}, {T[9]}")
    else:
        P(f"s_lshr_b32 s{S_TK}, s2, 3")
    P(f"s_mul_hi_u32 s{S_MT}, s{S_TK}, 0x55555556"); P(f"s_mul_i32 s{t[2]}, s{S_MT}, 3"); P(f"s_sub_u32 s{S_N3}, s{S_TK}, s{t[2]}")
    P(f"s_lshl_b32 s{t[2]}, s{S_P}, 7"); P(f"s_lshl_b32 s{t[3]}, s{S_KQ}, 5"); P(f"s_add_u32 s{t[2]}, s{t[2]}, s{t[3]}"); P(f"s_mul_i32 s{t[2]}, s{t[2]}, 80")
    P(f"s_lshl_b32 s{t[3]}, s{S_MT}, 3"); P(f"s_add_u32 s{t[2]}, s{t[2]}, s{t[3]}")
    P(f"s_lshl_b32 s{t[3]}, s{S_W}, 1"); P(f"s_add_u32 s{t[2]}, s{t[2]}, s{t[3]}")
    P(f"s_lshl_b32 s{S_OG0}, s{t[2]}, 10")
    P(f"s_mul_i32 s{S_WGB}, s{S_KQ}, {1024*1152}"); P(f"s_mul_i32 s{t[2]}, s{S_N3}, 384"); P(f"s_add_u32 s{S_WGB}, s{S_WGB}, s{t[2]}")
    P(f"s_mul_i32 s{t[2]}, s{S_W}, {8*1152}"); P(f"s_add_u32 s{S_WGB}, s{S_WGB}, s{t[2]}")
    P(f"s_lshl_b32 s{t[0]}, s{S_MT}, 7"); P(f"s_add_u32 s{t[1]}, s{t[0]}, 127")
    P(f"s_mul_i32 s{t[0]}, s{t[0]}, 52429"); P(f"s_lshr_b32 s{t[0]}, s{t[0]}, 23")
    P(f"s_mul_i32 s{t[1]}, s{t[1]}, 52429"); P(f"s_lshr_b32 s{t[1]}, s{t[1]}, 23")
    P(f"s_min_u32 s{t[0]}, s{t[0]}, 7"); P(f"s_min_u32 s{t[1]}, s{t[1]}, 7")
    P(f"s_lshl_b32 s{t[2]}, s{S_P}, 3")
    P(f"s_add_u32 s{t[0]}, s{t[0]}, s{t[2]}"); P(f"s_lshl_b32 s{t[0]}, s{t[0]}, 4")
    P(f"s_add_u32 s{t[1]}, s{t[1]}, s{t[2]}"); P(f"s_lshl_b32 s{t[1]}, s{t[1]}, 4")
    P(f"s_lshl_b32 s{t[2]}, s{S_KQ}, 2"); P(f"s_add_u32 s{t[0]}, s{t[0]}, s{t[2]}"); P(f"s_add_u32 s{t[1]}, s{t[1]}, s{t[2]}")
    VF_ = T[11]
    P(f"v_mov_b32 {VF_}, s{t[0]}"); P(f"v_mov_b32 {T[9]}, s{t[1]}"); P(f"v_cmp_gt_u32 vcc, 4, {L}")
    P(f"v_cndmask_b32 {VF_}, {T[9]}, {VF_}, vcc")
    P(f"v_and_b32 {T[9]}, 3, {L}"); P(f"v_add_u32 {VF_}, {VF_}, {T[9]}"); P(f"v_lshlrev_b32 {VF_}, 7, {VF_}")
    P(f"s_mov_b32 s{S_DONE}, 0")
    P(f"s_mul_i32 s{t[3]}, s{S_N3}, 3"); P(f"s_add_u32 s{t[3]}, s{t[3]}, s{S_MT}")
    if opts.get("g2norot"): P(f"s_mov_b32 s{t[3]}, 0")
    for k in range(8):
        P(f"s_add_u32 s{56+k}, s{t[3]}, {k if not opts.get('g2same') else 0}"); P(f"s_and_b32 s{56+k}, s{56+k}, 7")
    P(f"v_mov_b32 {T[14]}, {SEL + 64}")
    P(f"v_lshlrev_b32 v{V_OG}, 4, {L}")
    for u in range(3):
        P(f"v_add_u32 {T[0]}, {64*u}, {L}")
        P(f"v_mul_u32_u24 {T[1]}, 2731, {T[0]}"); P(f"v_lshrrev_b32 {T[1]}, 16, {T[1]}")
        P(f"v_mul_u32_u24 {T[2]}, 24, {T[1]}"); P(f"v_sub_u32 {T[2]}, {T[0]}, {T[2]}")
        P(f"v_lshrrev_b32 {T[3]}, 1, {T[1]}"); P(f"v_and_b32 {T[3]}, 3, {T[3]}"); P(f"v_lshlrev_b32 {T[3]}, 1, {T[3]}")
        P(f"v_xor_b32 {T[2]}, {T[2]}, {T[3]}"); P(f"v_lshlrev_b32 {T[2]}, 4, {T[2]}")
        P(f"v_mul_u32_u24 {T[1]}, 1152, {T[1]}"); P(f"v_add_u32 {T[1]}, {T[1]}, {T[2]}")
        P(f"v_add_u32 v{V_WG[u]}, s{S_WGB}, {T[1]}")
    P(f"s_lshr_b32 s{t[2]}, s{S_W}, 1"); P(f"s_lshl_b32 s{t[2]}, s{t[2]}, 12"); P(f"v_add_u32 v{V_OA}, s{t[2]}, v{V_OG}")
    P(f"v_lshrrev_b32 {T[0]}, 4, {L}"); P(f"v_and_b32 {T[1]}, 15, {L}"); P(f"v_lshrrev_b32 {T[1]}, 2, {T[1]}")
    P(f"v_lshlrev_b32 {T[2]}, 2, {T[0]}"); P(f"v_add_u32 {T[2]}, {T[2]}, {T[1]}")
    P(f"v_lshrrev_b32 {T[3]}, 1, {T[2]}"); P(f"v_and_b32 {T[3]}, 3, {T[3]}"); P(f"v_lshlrev_b32 {T[3]}, 1, {T[3]}")
    P(f"v_mul_u32_u24 {T[4]}, 384, {T[2]}")
    P(f"v_and_b32 {T[5]}, 3, {L}"); P(f"v_lshrrev_b32 {T[6]}, 1, {T[5]}"); P(f"v_and_b32 {T[5]}, 1, {T[5]}"); P(f"v_lshlrev_b32 {T[5]}, 3, {T[5]}")
    P(f"v_add_u32 {T[4]}, {T[4]}, {T[5]}"); P(f"v_add_u32 {T[4]}, {WBASE}, {T[4]}")
    P(f"s_and_b32 s{t[2]}, s{S_W}, 1"); P(f"s_mul_i32 s{t[2]}, s{t[2]}, 12")
    for nt in range(6):
        P(f"s_add_u32 s{t[3]}, s{t[2]}, {2*nt}"); P(f"v_add_u32 {T[7]}, s{t[3]}, {T[6]}"); P(f"v_xor_b32 {T[7]}, {T[7]}, {T[3]}")
        P(f"v_lshlrev_b32 {T[7]}, 4, {T[7]}"); P(f"v_add_u32 v{V_WA[nt]}, {T[7]}, {T[4]}")
    P("s_waitcnt lgkmcnt(0)")
    P(f"s_mov_b32 s{S_SRDD}, s70"); P(f"s_mov_b32 s{S_SRDD+1}, s71"); P(f"s_mov_b32 s{S_SRDD+2}, 256"); P(f"s_mov_b32 s{S_SRDD+3}, 0x20000")
    P(f"s_mov_b32 s{t[5]}, 0")
    P.label("L_g2_nonce")
    P(f"v_readfirstlane_b32 s{S_NONCE}, v234")
    P(f"s_cmp_lg_u32 s{S_NONCE}, 0"); P("s_cbranch_scc1 L_g2_nonce_ok")
    P(f"v_mov_b32 v235, 0")
    P(f"buffer_load_dword v234, v235, s[{S_SRDD}:{S_SRDD+3}], 0 offen sc1"); P("s_waitcnt vmcnt(0)")
    P(f"s_add_u32 s{t[5]}, s{t[5]}, 1"); P(f"s_cmp_lt_u32 s{t[5]}, 400000"); P("s_cbranch_scc1 L_g2_nonce")
    P.label("L_g2_nonce_ok")
    P(f"s_add_u32 s{S_SRDD}, s72, {FLAG_OFF}"); P(f"s_addc_u32 s{S_SRDD+1}, s73, 0"); P(f"s_mov_b32 s{S_SRDD+2}, {512*128}"); P(f"s_mov_b32 s{S_SRDD+3}, 0x20000")
    P(f"s_mov_b32 s{S_SRDO}, s72"); P(f"s_mov_b32 s{S_SRDO+1}, s73"); P(f"s_mov_b32 s{S_SRDO+2}, {2*80*128*1024}"); P(f"s_mov_b32 s{S_SRDO+3}, 0x20000")
    P(f"s_mov_b32 s{S_SRDW}, s64"); P(f"s_mov_b32 s{S_SRDW+1}, s65"); P(f"s_mov_b32 s{S_SRDW+2}, {4096*1152}"); P(f"s_mov_b32 s{S_SRDW+3}, 0x20000")
    P(f"s_add_u32 s{S_SRDX}, s72, {EX_OFF}"); P(f"s_addc_u32 s{S_SRDX+1}, s73, 0"); P(f"s_mov_b32 s{S_SRDX+2}, {60*16*12288}"); P(f"s_mov_b32 s{S_SRDX+3}, 0x20000")
    P(f"s_mov_b32 s{S_SRDOUT}, s68"); P(f"s_mov_b32 s{S_SRDOUT+1}, s69"); P(f"s_mov_b32 s{S_SRDOUT+2}, {1280*2304}"); P(f"s_mov_b32 s{S_SRDOUT+3}, 0x20000")
    P(f"s_lshl_b32 s{S_OL}, s{S_W}, 11"); P(f"s_mul_i32 s{S_WL}, s{S_W}, 3072"); P(f"s_add_u32 s{S_WL}, s{S_WL}, {WBASE}")
    for k in range(96): P(f"v_mov_b32 v{ACC + k}, 0")
    P(f"buffer_load_dword {T[12]}, {VF_}, s[{S_SRDD}:{S_SRDD+3}], 0 offen sc1")
    P("s_waitcnt vmcnt(0)"); P("s_barrier")
    stamp()
    P(f"s_cmp_lg_u32 s{S_W}, 0"); P("s_cbranch_scc1 L_g2_sig")
    P(f"v_mov_b32 {T[1]}, s67"); P(f"v_mov_b32 {T[2]}, s{S_NONCE}")
    P(f"v_cmp_eq_u32 vcc, 0, {L}"); P("s_and_saveexec_b64 s[74:75], vcc")
    P(f"buffer_store_dword {T[2]}, {T[1]}, s[{S_SRDD}:{S_SRDD+3}], 0 offen sc1")
    P("s_mov_b64 exec, s[74:75]")
    P.label("L_g2_sig")
    P(f"s_cmp_ge_u32 s{S_TK}, 30"); P("s_cbranch_scc1 L_g2_done")
    npick = [0]
    def pick(preloaded):
        k = npick[0]; npick[0] += 1
        P(f"s_cmp_lg_u32 s{S_W}, 0"); P(f"s_cbranch_scc1 L_g2_pk{k}_end")
        P(f"s_mov_b32 s{t[5]}, 0")
        if preloaded:
            P(f"s_waitcnt vmcnt({preloaded})"); P(f"s_branch L_g2_pk{k}_chk")
        P.label(f"L_g2_pk{k}_ld")
        P(f"buffer_load_dword {T[12]}, {VF_}, s[{S_SRDD}:{S_SRDD+3}], 0 offen sc1")
        P("s_waitcnt vmcnt(0)")
        P.label(f"L_g2_pk{k}_chk")
        P(f"v_cmp_eq_u32 vcc, s{S_NONCE}, {T[12]}")
        P(f"s_lshr_b32 s{t[7]}, vcc_lo, 4"); P(f"s_and_b32 s{t[6]}, vcc_lo, s{t[7]}"); P(f"s_and_b32 s{t[6]}, s{t[6]}, 15"); P(f"s_andn2_b32 s{t[6]}, s{t[6]}, s{S_DONE}")
        P(f"s_cmp_lg_u32 s{t[6]}, 0"); P(f"s_cbranch_scc1 L_g2_pk{k}_got")
        P(f"s_sleep {opts.get('slp', 1)}")
        P(f"s_add_u32 s{t[5]}, s{t[5]}, 1"); P(f"s_cmp_lt_u32 s{t[5]}, 400000"); P(f"s_cbranch_scc1 L_g2_pk{k}_ld")
        P(f"s_andn2_b32 s{t[6]}, 15, s{S_DONE}")
        P.label(f"L_g2_pk{k}_got")
        P(f"s_ff1_i32_b32 s{t[6]}, s{t[6]}")
        P(f"v_mov_b32 {T[13]}, s{t[6]}")
        P(f"ds_write_b32 {T[14]}, {T[13]}")
        P("s_waitcnt lgkmcnt(0)")
        P.label(f"L_g2_pk{k}_end")
    def take(dks, dkw):
        P(f"ds_read_b32 {T[13]}, {T[14]}"); P("s_waitcnt lgkmcnt(0)")
        P(f"v_readfirstlane_b32 s{S_SEG}, {T[13]}")
        P(f"s_lshl_b32 s{t[6]}, 1, s{S_SEG}"); P(f"s_or_b32 s{S_DONE}, s{S_DONE}, s{t[6]}")
        P(f"s_mul_i32 s{dks}, s{S_SEG}, {8*81920}"); P(f"s_add_u32 s{dks}, s{dks}, s{S_OG0}")
        P(f"s_mul_i32 s{dkw}, s{S_SEG}, {8*32*1152}")
    pick(63)
    P("s_barrier")
    take(S_KSC, S_KWC)
    stamp()

    osc = " sc1" if opts.get("osc1") else ""
    def dma_stage(s, nxt):
        buf = s % NBUF; tag = f"S{'n' if nxt else 'c'}{s}"
        ks, kw = (S_KSN, S_KWN) if nxt else (S_KSC, S_KWC)
        def dm(txt):
            def f(): P(txt); vq.push(tag)
            return f
        out = [f"s_mul_i32 s{t[8]}, s{56+s}, 81920", f"s_add_u32 s{t[8]}, s{t[8]}, s{ks}", f"s_add_u32 m0, s{S_OL}, {buf*OST}",
               dm(f"buffer_load_dwordx4 v{V_OG}, s[{S_SRDO}:{S_SRDO+3}], s{t[8]} offen{osc} lds"),
               dm(f"buffer_load_dwordx4 v{V_OG}, s[{S_SRDO}:{S_SRDO+3}], s{t[8]} offen offset:1024{osc} lds"),
               f"s_mul_i32 s{t[9]}, s{56+s}, {32*1152}", f"s_add_u32 s{t[9]}, s{t[9]}, s{kw}"]
        for u in range(3):
            out.append(f"s_add_u32 m0, s{S_WL}, {buf*WST + u*1024}")
            out.append(dm(f"buffer_load_dwordx4 v{V_WG[u]}, s[{S_SRDW}:{S_SRDW+3}], s{'29' if False else t[9]} offen lds"))
        if opts.get("g2same"):
            out = [x for x in out]
        return out
    def run(l):
        for x in l:
            if callable(x): x()
            elif isinstance(x, list): run(x)
            else: P(x)
    def rd_stage(s):
        buf = s % NBUF; fs = s & 1
        res = [f"ds_read_b128 {vr(BFr(fs, rt))}, v{V_OA} offset:{buf*OST + rt*1024}" for rt in range(4)]
        for nt in range(6):
            for h in range(2):
                res.append(f"ds_read_b64_tr_b16 {vr(AFr(fs, nt) + 2*h, 2)}, v{V_WA[nt]} offset:{buf*WST + h*16*384}")
        return [res[0], res[4], res[5]] + res[1:4] + res[6:]
    def segment(last):
        for s in range(8):
            fs = s & 1
            mf = [f"v_mfma_f32_16x16x32_bf16 {vr(A_(rt, nt))}, {vr(AFr(fs, nt))}, {vr(BFr(fs, rt))}, {vr(A_(rt, nt))}" for nt in range(6) for rt in range(4)]
            for m in mf[:2]: P(m)
            if s < 7: vq.wait(P, f"Sc{s+1}")
            elif not last: vq.wait(P, "Sn0")
            if not (last and s == 7): P("s_barrier")
            dm = []
            if s + 3 < 8: dm = dma_stage(s + 3, False)
            elif not last:
                if s == 5: take(S_KSN, S_KWN)
                dm = dma_stage(s + 3 - 8, True)
            if s == 2 and not last:
                def fl():
                    P(f"buffer_load_dword {T[12]}, {VF_}, s[{S_SRDD}:{S_SRDD+3}], 0 offen sc1"); vq.push("F")
                dm = dm + [fl]
            rd = rd_stage(s + 1) if s < 7 else ([] if last else rd_stage(0))
            fill = []; di = ri = 0
            while di < len(dm) or ri < len(rd):
                if ri < len(rd): fill.append(rd[ri]); ri += 1
                if di < len(dm): fill.append(dm[di]); di += 1
            interleave(P, mf[2:], fill)
            if s == 4 and not last:
                P.autolgkm = False
                P("s_waitcnt lgkmcnt(0)")
                nf = len(vq.q) - 1 - vq.q.index("F") if "F" in vq.q else 63
                pick(nf if nf > 0 else 63)
                P.autolgkm = True
    P.autolgkm = True
    for i in range(3): run(dma_stage(i, False))
    vq.wait(P, "Sc0"); P("s_barrier"); run(rd_stage(0))
    P(f"s_mov_b32 s{t[10]}, 0")
    P("s_waitcnt lgkmcnt(0)")
    q0 = list(vq.q)
    if opts.get("g2unroll"):
        for it in range(3):
            segment(False)
            P("s_waitcnt lgkmcnt(0)")
            vq.q = [x.replace("Sn", "Sc") for x in vq.q if x != "F"]
            assert vq.q == q0, (vq.q, q0)
            P(f"s_mov_b32 s{S_KSC}, s{S_KSN}"); P(f"s_mov_b32 s{S_KWC}, s{S_KWN}")
            stamp()
    else:
        if opts.get("align"): P.raw(".p2align 6")
        P.label("L_g2_seg")
        segment(False)
        P("s_waitcnt lgkmcnt(0)")
        vq.q = [x.replace("Sn", "Sc") for x in vq.q if x != "F"]
        assert vq.q == q0, (vq.q, q0)
        P(f"s_mov_b32 s{S_KSC}, s{S_KSN}"); P(f"s_mov_b32 s{S_KWC}, s{S_KWN}")
        P(f"s_add_u32 s{t[10]}, s{t[10]}, 1"); P(f"s_cmp_lt_u32 s{t[10]}, 3"); P("s_cbranch_scc1 L_g2_seg")
    segment(True)
    P("s_waitcnt lgkmcnt(0)")
    P.autolgkm = False
    stamp()
    PK = 128
    P(f"s_mul_i32 s{t[0]}, s{S_P}, 30"); P(f"s_add_u32 s{t[0]}, s{t[0]}, s{S_TK}")
    P(f"s_mul_i32 s{t[2]}, s{S_W}, 3072")
    P(f"v_lshlrev_b32 {T[0]}, 4, {L}")
    for j in range(4):
        lab = f"L_g2_skip{j}"
        P(f"s_cmp_eq_u32 s{S_KQ}, {j}"); P(f"s_cbranch_scc1 {lab}")
        for nt in range(6):
            a = A_(j, nt); d = PK + j * 12 + nt * 2
            P(f"v_cvt_pk_bf16_f32 v{d}, v{a}, v{a+1}"); P(f"v_cvt_pk_bf16_f32 v{d+1}, v{a+2}, v{a+3}")
        P(f"s_lshl_b32 s{t[3]}, s{t[0]}, 2"); P(f"s_add_u32 s{t[3]}, s{t[3]}, {j}"); P(f"s_lshl_b32 s{t[3]}, s{t[3]}, 2"); P(f"s_add_u32 s{t[3]}, s{t[3]}, s{S_KQ}")
        P(f"s_mul_i32 s{t[3]}, s{t[3]}, 12288"); P(f"s_add_u32 s{t[3]}, s{t[3]}, s{t[2]}")
        for u in range(3):
            P(f"buffer_store_dwordx4 {vr(PK + j*12 + 4*u)}, {T[0]}, s[{S_SRDX}:{S_SRDX+3}], s{t[3]} offen offset:{u*1024} sc1")
        P.label(lab)
    OWN = 208
    for j in range(4):
        lab = f"L_g2_mv{j}"
        P(f"s_cmp_lg_u32 s{S_KQ}, {j}"); P(f"s_cbranch_scc1 {lab}")
        for nt in range(6):
            for r in range(4): P(f"v_mov_b32 v{OWN + nt*4 + r}, v{A_(j, nt) + r}")
        P.label(lab)
    P("s_waitcnt vmcnt(0)"); P("s_barrier")
    P(f"s_cmp_lg_u32 s{S_W}, 0"); P("s_cbranch_scc1 L_g2_xw")
    P(f"s_lshl_b32 s{t[4]}, s{t[0]}, 2"); P(f"s_add_u32 s{t[4]}, s{t[4]}, 256")
    P(f"v_and_b32 {T[3]}, 3, {L}"); P(f"v_add_u32 {T[3]}, s{t[4]}, {T[3]}"); P(f"v_lshlrev_b32 {T[3]}, 7, {T[3]}")
    P(f"s_add_u32 s{t[4]}, s{t[4]}, s{S_KQ}"); P(f"s_lshl_b32 s{t[4]}, s{t[4]}, 7")
    P(f"v_mov_b32 {T[1]}, s{t[4]}"); P(f"v_mov_b32 {T[2]}, s{S_NONCE}")
    P(f"v_cmp_eq_u32 vcc, 0, {L}"); P("s_and_saveexec_b64 s[74:75], vcc")
    P(f"buffer_store_dword {T[2]}, {T[1]}, s[{S_SRDD}:{S_SRDD+3}], 0 offen sc1")
    P("s_mov_b64 exec, s[74:75]")
    P(f"s_mov_b32 s{t[5]}, 0")
    P.label("L_g2_xpoll")
    P(f"buffer_load_dword {T[4]}, {T[3]}, s[{S_SRDD}:{S_SRDD+3}], 0 offen sc1")
    P("s_waitcnt vmcnt(0)")
    P(f"v_cmp_ne_u32 vcc, s{S_NONCE}, {T[4]}")
    P("s_cbranch_vccz L_g2_xw")
    P(f"s_sleep {opts.get('slp', 1)}")
    P(f"s_add_u32 s{t[5]}, s{t[5]}, 1"); P(f"s_cmp_lt_u32 s{t[5]}, 400000"); P("s_cbranch_scc1 L_g2_xpoll")
    P.label("L_g2_xw")
    P("s_barrier")
    stamp()
    R0 = 128
    for u in range(1, 4):
        P(f"s_add_u32 s{t[4]}, s{S_KQ}, {u}"); P(f"s_and_b32 s{t[4]}, s{t[4]}, 3")
        P(f"s_lshl_b32 s{t[3]}, s{t[0]}, 2"); P(f"s_add_u32 s{t[3]}, s{t[3]}, s{S_KQ}"); P(f"s_lshl_b32 s{t[3]}, s{t[3]}, 2"); P(f"s_add_u32 s{t[3]}, s{t[3]}, s{t[4]}")
        P(f"s_mul_i32 s{t[3]}, s{t[3]}, 12288"); P(f"s_add_u32 s{t[3]}, s{t[3]}, s{t[2]}")
        for c in range(3):
            P(f"buffer_load_dwordx4 {vr(R0 + (u-1)*12 + c*4)}, {T[0]}, s[{S_SRDX}:{S_SRDX+3}], s{t[3]} offen offset:{c*1024} sc1")
    P(f"s_lshl_b32 s{t[3]}, s{S_MT}, 3"); P(f"s_lshr_b32 s{t[4]}, s{S_W}, 1"); P(f"s_lshl_b32 s{t[4]}, s{t[4]}, 2"); P(f"s_add_u32 s{t[3]}, s{t[3]}, s{t[4]}")
    P(f"s_add_u32 s{t[3]}, s{t[3]}, s{S_KQ}"); P(f"s_mul_i32 s{t[3]}, s{t[3]}, {16*2304}")
    P(f"s_mul_i32 s{t[4]}, s{S_P}, 1152"); P(f"s_add_u32 s{t[3]}, s{t[3]}, s{t[4]}")
    P(f"s_mul_i32 s{t[4]}, s{S_N3}, 384"); P(f"s_add_u32 s{t[3]}, s{t[3]}, s{t[4]}")
    P(f"s_and_b32 s{t[4]}, s{S_W}, 1"); P(f"s_mul_i32 s{t[4]}, s{t[4]}, 192"); P(f"s_add_u32 s{t[3]}, s{t[3]}, s{t[4]}")
    P(f"v_and_b32 {T[1]}, 15, {L}"); P(f"v_mul_u32_u24 {T[1]}, 2304, {T[1]}"); P(f"v_lshrrev_b32 {T[2]}, 4, {L}"); P(f"v_lshlrev_b32 {T[2]}, 4, {T[2]}")
    P(f"v_add_u32 {T[1]}, {T[1]}, {T[2]}")
    P(f"s_mov_b32 s{t[5]}, 0xffff0000")
    for u in range(3):
        P(f"s_waitcnt vmcnt({3*(2-u)})")
        for k in range(12):
            src = R0 + u*12 + k
            d = OWN + (k // 2) * 4 + (k & 1) * 2
            P(f"v_lshlrev_b32 {T[3]}, 16, v{src}"); P(f"v_and_b32 {T[4]}, s{t[5]}, v{src}")
            P(f"v_add_f32 v{d}, v{d}, {T[3]}"); P(f"v_add_f32 v{d+1}, v{d+1}, {T[4]}")
    for u in range(3):
        A = OWN + (2*u) * 4; B = OWN + (2*u + 1) * 4
        P(f"v_cvt_pk_bf16_f32 v{A}, v{A}, v{A+1}"); P(f"v_cvt_pk_bf16_f32 v{A+1}, v{A+2}, v{A+3}")
        P(f"v_cvt_pk_bf16_f32 v{B}, v{B}, v{B+1}"); P(f"v_cvt_pk_bf16_f32 v{B+1}, v{B+2}, v{B+3}")
    for u in range(3):
        A = OWN + (2*u) * 4; B = OWN + (2*u + 1) * 4
        P(f"v_permlane32_swap_b32 v{A}, v{B}"); P(f"v_permlane32_swap_b32 v{A+1}, v{B+1}")
    for u in range(3):
        A = OWN + (2*u) * 4; B = OWN + (2*u + 1) * 4
        P(f"v_permlane16_swap_b32 v{A}, v{B}"); P(f"v_permlane16_swap_b32 v{A+1}, v{B+1}")
    for u in range(3):
        A = OWN + (2*u) * 4; B = OWN + (2*u + 1) * 4
        P(f"v_mov_b32 v{A+2}, v{B}"); P(f"v_mov_b32 v{A+3}, v{B+1}")
    for u in range(3):
        A = OWN + (2*u) * 4
        P(f"buffer_store_dwordx4 {vr(A)}, {T[1]}, s[{S_SRDOUT}:{S_SRDOUT+3}], s{t[3]} offen offset:{u*64}")
    if stamps:
        P("s_waitcnt vmcnt(0)")
        stamp()
        P("s_waitcnt lgkmcnt(0)")
        for i in range(8): P(f"v_mov_b32 v{4+i}, s{80+2*min(i, nst[0]-1)}")
        P(f"s_lshl_b32 s{t[0]}, s2, 2"); P(f"s_add_u32 s{t[0]}, s{t[0]}, s{S_W}"); P(f"s_lshl_b32 s{t[0]}, s{t[0]}, 5")
        P(f"s_add_u32 s76, s72, 0x4100000"); P("s_addc_u32 s77, s73, 0"); P("s_mov_b32 s78, 0x100000"); P("s_mov_b32 s79, 0x20000")
        P(f"v_mov_b32 v12, s{t[0]}"); P(f"v_cmp_eq_u32 vcc, 0, {L}"); P("s_and_saveexec_b64 s[74:75], vcc")
        P("buffer_store_dwordx4 v[4:7], v12, s[76:79], 0 offen")
        P("buffer_store_dwordx4 v[8:11], v12, s[76:79], 0 offen offset:16")
    P.label("L_g2_done")
```

```python
from asmlib import *

WREG = 40960
SLOT_K = [0, 16384]
SLOT_V = [8192, 24576]
STG = 16384
CSCALE = 0.08838834764831845 * 1.4426950408889634
BIAS = 7.0

import struct
def f2u(x): return struct.unpack("<I", struct.pack("<f", x))[0]

V_L = 0
V_XA = 1
V_WA = list(range(2, 10))
V_XG = 10
V_WG = [11, 12]
V_KA = list(range(13, 17))
V_KG = list(range(17, 21))
V_VG = [21, 22]
V_T = list(range(23, 32))
V_WG4 = [224, 225, 226, 227]
V_XG5 = [228, 229, 230, 231, 232]
V_XA2 = [1, 233]
KF = 32
S0 = 64
P0 = 104
NM = 124
LL = 144
VF = 164
ONES = 196
ET = 200
ACC = 64
def S(kt, qt): return S0 + (qt * 2 + kt) * 4
def vr(b, n=4): return f"v[{b}:{b+n-1}]"
def ar(b, n=4): return f"a[{b}:{b+n-1}]"
def Oa(dt, qt): return (dt * 5 + qt) * 4
def Qa(qt, s): return 160 + (qt * 4 + s) * 4
def XF(st, qt): return st * 52 + qt * 4
def WF(st, dt): return st * 52 + 20 + dt * 4

S_SRDX, S_SRDW, S_SRDK, S_SRDV, S_SRDO = 4, 8, 12, 16, 20
S_W, S_P, S_B, S_H = 24, 25, 26, 27
S_WB = 28
S_KOFF = 29
S_VOFF = 30
S_XG = [31, 32, 33]
S_XL = [34, 35, 36]
S_WGB = 37
S_WL = 38
S_KX = 39
S_KW = 40
S_T = list(range(41, 56))
S_CNT = 56
S_RET = 58
S_OB = 60
S_C = 61
S_MASK = 62
S_RHO = 63
S_WBH = 31
S_AOFF = 32

class VQ:
    def __init__(self): self.q = []
    def push(self, tag): self.q.append(tag)
    def wait(self, P, tag):
        if tag not in self.q: return None
        idx = max(i for i, t in enumerate(self.q) if t == tag)
        n = len(self.q) - 1 - idx
        assert n <= 63, n
        P(f"s_waitcnt vmcnt({n})")
        self.q = self.q[idx + 1:]
        return n

def gen_k1(P, nt=" nt", name="attn_kernel", stamps=False, opts={}):
    vq = VQ()
    P.raw(f".globl {name}\n.p2align 8\n.type {name},@function\n{name}:")
    P("s_cmp_ge_u32 s2, 256"); P("s_cbranch_scc1 L_k1_done")
    t = S_T
    P(f"s_and_b32 s{t[0]}, s2, 7")
    P(f"s_lshr_b32 s{t[1]}, s2, 3")
    P(f"s_and_b32 s{S_P}, s{t[1]}, 1")
    P(f"s_lshr_b32 s{t[1]}, s{t[1]}, 1")
    P(f"s_mul_i32 s{t[4]}, s{S_P}, 40")
    P(f"s_add_u32 s{t[5]}, s0, s{t[4]}"); P(f"s_addc_u32 s{t[6]}, s1, 0")
    assert t[5] % 2 == 0
    P(f"s_load_dwordx8 s[64:71], s[{t[5]}:{t[6]}], 0")
    P(f"s_load_dwordx2 s[72:73], s[0:1], 96")
    nst = opts.setdefault("_nst", [0])
    def stamp(grp="main"):
        if stamps and (grp == opts.get("stgrp", "main") or (grp == "all3" and opts.get("stgrp") == "all")) and nst[0] < 8:
            P(f"s_memrealtime s[{80+2*nst[0]}:{81+2*nst[0]}]"); nst[0] += 1
            if grp == "clk":
                P(f"s_memtime s[{80+2*nst[0]}:{81+2*nst[0]}]"); nst[0] += 1
    if opts.get("stgrp", "main") not in ("k2", "none"): stamp(opts.get("stgrp", "main"))
    P(f"v_lshrrev_b32 v1, 6, v0"); P(f"v_and_b32 v{V_L}, 63, v0")
    P(f"v_readfirstlane_b32 s{S_W}, v1")
    P(f"s_and_b32 s{t[2]}, s{t[1]}, 3")
    P(f"s_lshr_b32 s{t[3]}, s{t[1]}, 2")
    P(f"s_add_u32 s{t[7]}, s{t[2]}, s{t[3]}"); P(f"s_and_b32 s{S_RHO}, s{t[7]}, 3")
    P(f"s_and_b32 s{t[8]}, s{t[0]}, 3"); P(f"s_lshl_b32 s{t[8]}, s{t[8]}, 2"); P(f"s_add_u32 s{t[2]}, s{t[2]}, s{t[8]}")
    P(f"s_lshr_b32 s{t[8]}, s{t[0]}, 2"); P(f"s_lshl_b32 s{t[8]}, s{t[8]}, 2"); P(f"s_add_u32 s{t[3]}, s{t[3]}, s{t[8]}")
    if opts.get("norot"): P(f"s_mov_b32 s{S_RHO}, 0")
    if opts.get("rotmode") == "xcd":
        k = opts.get("rotk", "x")
        if k == "x": P(f"s_and_b32 s{S_RHO}, s2, 7")
        elif k == "coarse":
            P(f"s_mul_i32 s{S_RHO}, s{S_RHO}, 9"); P(f"s_lshr_b32 s{S_RHO}, s{S_RHO}, 2")
        elif k == "xp":
            P(f"s_and_b32 s{S_RHO}, s2, 7"); P(f"s_mul_i32 s{t[14]}, s{S_P}, 4"); P(f"s_add_u32 s{S_RHO}, s{S_RHO}, s{t[14]}"); P(f"s_cmp_ge_u32 s{S_RHO}, 9"); P(f"s_cselect_b32 s{t[14]}, 9, 0"); P(f"s_sub_u32 s{S_RHO}, s{S_RHO}, s{t[14]}")
        elif k == "half":
            P(f"s_and_b32 s{S_RHO}, s{S_RHO}, 1"); P(f"s_mul_i32 s{S_RHO}, s{S_RHO}, 4"); P(f"s_and_b32 s{t[14]}, s2, 3"); P(f"s_add_u32 s{S_RHO}, s{S_RHO}, s{t[14]}")
    P(f"s_lshr_b32 s{t[8]}, s{S_W}, 1"); P(f"s_lshl_b32 s{S_B}, s{t[3]}, 1"); P(f"s_add_u32 s{S_B}, s{S_B}, s{t[8]}")
    P(f"s_and_b32 s{t[9]}, s{S_W}, 1"); P(f"s_lshl_b32 s{S_H}, s{t[2]}, 1"); P(f"s_add_u32 s{S_H}, s{S_H}, s{t[9]}")
    P(f"s_mul_i32 s{S_WB}, s{S_W}, {WREG}")
    P(f"s_cmp_eq_u32 s{S_P}, 0")
    P(f"s_cselect_b32 s{t[10]}, s{t[2]}, s{S_H}")
    P(f"s_add_u32 s{t[11]}, s{S_P}, 4"); P(f"s_lshl_b32 s{t[11]}, s{S_B}, s{t[11]}")
    P(f"s_add_u32 s{t[10]}, s{t[10]}, s{t[11]}"); P(f"s_lshl_b32 s{S_KOFF}, s{t[10]}, 17")
    P(f"s_mov_b32 s{S_VOFF}, s{S_KOFF}")
    P(f"s_lshl_b32 s{t[12]}, s{t[3]}, 1"); P(f"s_add_u32 s{t[12]}, s{t[12]}, s{t[8]}")
    P(f"s_mul_i32 s{S_XG[0]}, s{t[12]}, {80*1152}"); P(f"s_mul_i32 s{t[13]}, s{t[9]}, {40*1152}"); P(f"s_add_u32 s{S_XG[0]}, s{S_XG[0]}, s{t[13]}")
    P(f"s_add_u32 s{t[11]}, s{t[8]}, 2"); P(f"s_mul_i32 s{t[11]}, s{t[11]}, {WREG}"); P(f"s_mul_i32 s{t[13]}, s{t[9]}, 5120")
    P(f"s_add_u32 s{S_XL[0]}, s{t[11]}, s{t[13]}"); P(f"s_add_u32 s{S_XL[0]}, s{S_XL[0]}, {STG}")
    P(f"s_lshl_b32 s{S_WGB}, s{t[8]}, 17"); P(f"s_lshl_b32 s{t[10]}, s{S_H}, 8"); P(f"s_add_u32 s{S_WGB}, s{S_WGB}, s{t[10]}")
    P(f"s_mul_i32 s{S_WL}, s{t[9]}, {WREG}"); P(f"s_lshl_b32 s{t[10]}, s{t[8]}, 12"); P(f"s_add_u32 s{S_WL}, s{S_WL}, s{t[10]}")
    P(f"s_add_u32 s{S_WL}, s{S_WL}, {STG}")
    P(f"s_lshl_b32 s{S_OB}, s{S_P}, 7"); P(f"s_lshl_b32 s{t[10]}, s{S_H}, 2"); P(f"s_add_u32 s{S_OB}, s{S_OB}, s{t[10]}")
    P(f"s_mul_i32 s{S_OB}, s{S_OB}, 80"); P(f"s_mul_i32 s{t[10]}, s{S_B}, 5"); P(f"s_add_u32 s{S_OB}, s{S_OB}, s{t[10]}")
    P(f"s_lshl_b32 s{S_OB}, s{S_OB}, 10")
    P(f"s_mov_b32 s{S_C}, {f2u(CSCALE):#x}"); P(f"s_mov_b32 s{S_MASK}, 0x40004000")
    L = f"v{V_L}"; T = [f"v{x}" for x in V_T]
    P(f"v_lshrrev_b32 {T[0]}, 3, {L}")
    P(f"v_lshrrev_b32 {T[1]}, 4, {L}")
    P(f"v_and_b32 {T[3]}, 7, {L}"); P(f"v_xor_b32 {T[3]}, {T[3]}, {T[1]}"); P(f"v_lshlrev_b32 {T[3]}, 4, {T[3]}")
    P(f"v_mul_u32_u24 v{V_XG}, 1152, {T[0]}"); P(f"v_add_u32 v{V_XG}, v{V_XG}, {T[3]}")
    P(f"v_and_b32 {T[4]}, 15, {L}")
    P(f"v_lshrrev_b32 {T[5]}, 2, {T[4]}")
    P(f"v_lshrrev_b32 {T[2]}, 1, {T[4]}"); P(f"v_xor_b32 {T[2]}, {T[2]}, {T[1]}"); P(f"v_lshlrev_b32 {T[2]}, 4, {T[2]}")
    P(f"v_lshlrev_b32 v{V_XA2[0]}, 7, {T[4]}"); P(f"v_add_u32 v{V_XA2[0]}, v{V_XA2[0]}, {T[2]}")
    P(f"s_add_u32 s{t[10]}, s{t[8]}, 2"); P(f"s_mul_i32 s{t[10]}, s{t[10]}, {WREG}"); P(f"s_add_u32 s{t[10]}, s{t[10]}, {STG}")
    P(f"v_add_u32 v{V_XA2[0]}, s{t[10]}, v{V_XA2[0]}"); P(f"v_xor_b32 v{V_XA2[1]}, 64, v{V_XA2[0]}")
    P(f"v_lshlrev_b32 {T[2]}, 1, {T[1]}"); P(f"v_xor_b32 {T[2]}, {T[2]}, {T[4]}"); P(f"v_lshlrev_b32 {T[2]}, 4, {T[2]}")
    P(f"v_lshlrev_b32 v{V_WG[0]}, 13, {T[1]}"); P(f"v_add_u32 v{V_WG[0]}, v{V_WG[0]}, {T[2]}")
    P(f"v_xor_b32 v{V_WG[1]}, 0x80, v{V_WG[0]}")
    P(f"v_and_b32 {T[6]}, 3, {L}"); P(f"v_lshlrev_b32 {T[6]}, 3, {T[6]}")
    P(f"v_lshlrev_b32 {T[2]}, 3, {T[1]}"); P(f"v_add_u32 {T[2]}, {T[2]}, {T[5]}"); P(f"v_lshlrev_b32 {T[2]}, 8, {T[2]}")
    P(f"v_and_b32 {T[3]}, 1, {T[1]}"); P(f"v_lshlrev_b32 {T[3]}, 2, {T[3]}"); P(f"v_or_b32 {T[3]}, {T[3]}, {T[5]}"); P(f"v_lshlrev_b32 {T[7]}, 5, {T[3]}")
    P(f"v_add_u32 {T[2]}, {T[2]}, {T[7]}"); P(f"v_add_u32 {T[2]}, {T[2]}, {T[6]}")
    P(f"s_mul_i32 s{t[10]}, s{t[9]}, {WREG}"); P(f"s_add_u32 s{t[10]}, s{t[10]}, {STG}")
    P(f"v_add_u32 v{V_WA[0]}, s{t[10]}, {T[2]}")
    for dt in range(1, 8): P(f"v_xor_b32 v{V_WA[dt]}, {dt*32}, v{V_WA[0]}")
    P(f"v_xor_b32 {T[2]}, {T[4]}, {T[1]}"); P(f"v_lshlrev_b32 {T[2]}, 4, {T[2]}")
    P(f"v_lshlrev_b32 {T[3]}, 8, {T[1]}"); P(f"v_add_u32 v{V_KG[0]}, {T[3]}, {T[2]}")
    for v in range(1, 4): P(f"v_xor_b32 v{V_KG[v]}, {64*v}, v{V_KG[0]}")
    P(f"v_lshlrev_b32 {T[7]}, 8, {T[4]}"); P(f"v_add_u32 {T[7]}, {T[7]}, {T[2]}"); P(f"v_add_u32 v{V_KA[0]}, s{S_WB}, {T[7]}")
    for s in range(1, 4): P(f"v_xor_b32 v{V_KA[s]}, {64*s}, v{V_KA[0]}")
    P(f"v_lshlrev_b32 {T[2]}, 1, {T[1]}"); P(f"v_xor_b32 {T[2]}, {T[2]}, {T[4]}"); P(f"v_lshlrev_b32 {T[2]}, 4, {T[2]}")
    P(f"v_add_u32 v{V_VG[0]}, {T[3]}, {T[2]}"); P(f"v_xor_b32 v{V_VG[1]}, 0x80, v{V_VG[0]}")
    P(f"v_lshlrev_b32 {T[2]}, 2, {T[1]}"); P(f"v_add_u32 {T[2]}, {T[2]}, {T[5]}"); P(f"v_and_b32 {T[3]}, 7, {T[2]}")
    P(f"v_lshlrev_b32 {T[2]}, 8, {T[2]}"); P(f"v_lshlrev_b32 {T[3]}, 5, {T[3]}"); P(f"v_add_u32 {T[2]}, {T[2]}, {T[3]}")
    P(f"v_add_u32 {T[2]}, {T[2]}, {T[6]}"); P(f"v_add_u32 {T[8]}, s{S_WB}, {T[2]}")
    for u in range(4):
        P(f"s_add_u32 s{t[10]}, s{S_WGB}, {u*32768}"); P(f"v_add_u32 v{V_WG4[u]}, s{t[10]}, v{V_WG[u>>1]}")
    for u in range(5):
        P(f"s_add_u32 s{t[10]}, s{t[9]}, {u}"); P(f"s_and_b32 s{t[10]}, s{t[10]}, 1"); P(f"s_lshl_b32 s{t[10]}, s{t[10]}, 6")
        P(f"v_xor_b32 v{V_XG5[u]}, s{t[10]}, v{V_XG}")
        P(f"s_add_u32 s{t[10]}, s{S_XG[0]}, {u*8*1152}"); P(f"v_add_u32 v{V_XG5[u]}, s{t[10]}, v{V_XG5[u]}")
    stamp("pro")
    P("s_waitcnt lgkmcnt(0)")
    stamp("pro")
    P(f"s_mov_b32 s{S_SRDX}, s64"); P(f"s_mov_b32 s{S_SRDX+1}, s65"); P(f"s_mov_b32 s{S_SRDX+2}, {16*80*1152}"); P(f"s_mov_b32 s{S_SRDX+3}, 0x20000")
    P(f"s_mov_b32 s{S_SRDW}, s70"); P(f"s_mov_b32 s{S_SRDW+1}, s71"); P(f"s_mov_b32 s{S_SRDW+2}, {576*8192}"); P(f"s_mov_b32 s{S_SRDW+3}, 0x20000")
    P(f"s_add_u32 s{t[10]}, s{S_P}, 25"); P(f"s_lshl_b32 s{t[10]}, 1, s{t[10]}")
    P(f"s_mov_b32 s{S_SRDK}, s66"); P(f"s_mov_b32 s{S_SRDK+1}, s67"); P(f"s_mov_b32 s{S_SRDK+2}, s{t[10]}"); P(f"s_mov_b32 s{S_SRDK+3}, 0x20000")
    P(f"s_mov_b32 s{S_SRDV}, s68"); P(f"s_mov_b32 s{S_SRDV+1}, s69"); P(f"s_mov_b32 s{S_SRDV+2}, s{t[10]}"); P(f"s_mov_b32 s{S_SRDV+3}, 0x20000")
    P(f"s_mov_b32 s{S_SRDO}, s72"); P(f"s_mov_b32 s{S_SRDO+1}, s73"); P(f"s_mov_b32 s{S_SRDO+2}, {2*80*128*1024}"); P(f"s_mov_b32 s{S_SRDO+3}, 0x20000")

    def dcalc(tau, dst, sh):
        if opts.get("rotmode", "fine") == "xcd":
            return [[f"s_add_u32 s{dst}, s{S_RHO}, {tau}", f"s_cmp_ge_u32 s{dst}, 9", f"s_cselect_b32 s{t[14]}, 9, 0", f"s_sub_u32 s{dst}, s{dst}, s{t[14]}"], f"s_lshl_b32 s{dst}, s{dst}, {sh}"]
        if tau == 8: return [f"s_mov_b32 s{dst}, {8 << sh}"]
        m, r = tau >> 2, tau & 3
        return [[f"s_add_u32 s{dst}, s{S_RHO}, {r}", f"s_and_b32 s{dst}, s{dst}, 3", f"s_add_u32 s{dst}, s{dst}, {4*m}", f"s_lshl_b32 s{dst}, s{dst}, {sh}"]]
    def dma_w(st_idx):
        buf = st_idx % 3
        out = []; tag = f"W{st_idx}"
        def dm(txt):
            def f(): P(txt); vq.push(tag)
            return f
        if st_idx % 2 == 0: out += dcalc(st_idx >> 1, S_KW, 19)
        else: out.append(f"s_add_u32 s{S_KW}, s{S_KW}, 0x40000")
        for u in range(4):
            out.append(f"s_add_u32 m0, s{S_WL}, {buf*8192 + u*1024}")
            out.append(dm(f"buffer_load_dwordx4 v{V_WG4[u]}, s[{S_SRDW}:{S_SRDW+3}], s{S_KW} offen{opts.get('wfl','').replace('_',' ')} lds"))
        return out
    def dma_x(D):
        bx = (D + 1) & 1
        out = []; tag = f"X{D}"
        def dm(txt):
            def f(): P(txt); vq.push(tag)
            return f
        out += dcalc(D, S_KX, 7)
        for u in range(5):
            out.append(f"s_add_u32 m0, s{S_XL[0]}, {bx*10240 + u*1024}")
            out.append(dm(f"buffer_load_dwordx4 v{V_XG5[u]}, s[{S_SRDX}:{S_SRDX+3}], s{S_KX} offen{opts.get('xfl','').replace('_',' ')} lds"))
        return out
    thr = [None]
    def dma_kv(which, blk, slot):
        out = []
        srd = S_SRDK if which == "K" else S_SRDV
        off = S_KOFF if which == "K" else S_VOFF
        tag = f"{which}{blk}"
        def dm(txt):
            def f(): P(txt); vq.push(tag)
            return f
        for i in range(8):
            if i % 4 == 0:
                if i == 4: out.append(f"s_add_u32 s{off}, s{off}, 4096")
                out.append(f"s_add_u32 m0, s{S_WB}, {slot + (i>>2)*4096}")
            vg = V_KG[i & 3] if which == "K" else V_VG[i & 1]
            o = f" offset:{(i&3)*1024}" if i & 3 else ""
            if thr[0] is not None: out.append(f"s_waitcnt vmcnt({thr[0]})")
            out.append(dm(f"buffer_load_dwordx4 v{vg}, s[{srd}:{srd+3}], s{off} offen{o}{nt} lds"))
        out.append(f"s_add_u32 s{off}, s{off}, 4096")
        return out
    def dma_kv_half(which, blk, slot):
        out = []
        srd = S_SRDK if which == "K" else S_SRDV
        off = S_KOFF if which == "K" else S_VOFF
        tag = f"{which}{blk}"
        def dm(txt):
            def f(): P(txt); vq.push(tag)
            return f
        out.append(f"s_add_u32 m0, s{S_WBH}, {slot}")
        for i in range(4):
            vg = V_KG[i & 3] if which == "K" else V_VG[i & 1]
            o = f" offset:{i*1024}" if i else ""
            out.append(dm(f"buffer_load_dwordx4 v{vg}, s[{srd}:{srd+3}], s{off} offen{o}{nt} lds"))
        out.append(f"s_add_u32 s{off}, s{off}, 8192")
        return out
    def run(l):
        for x in l:
            if callable(x): x()
            elif isinstance(x, list): run(x)
            else: P(x)
    def rd_stage(st_idx):
        buf = st_idx % 3; fs = st_idx & 1; D = st_idx >> 1; bx = (D + 1) & 1; hf = st_idx & 1
        out = []
        for qt in range(5):
            out.append(f"ds_read_b128 {ar(XF(fs, qt))}, v{V_XA2[hf]} offset:{bx*10240 + qt*2048}")
        for dt in range(8):
            out.append(f"ds_read_b64_tr_b16 {ar(WF(fs, dt), 2)}, v{V_WA[dt]} offset:{buf*8192}")
            out.append(f"ds_read_b64_tr_b16 {ar(WF(fs, dt)+2, 2)}, v{V_WA[dt]} offset:{buf*8192 + 1024}")
        return [out[0], out[5], out[6]] + out[1:5] + out[7:]

    if opts.get("g2"):
        P("s_cmp_lg_u32 s2, 0"); P("s_cbranch_scc1 L_k1_nononce"); P(f"s_cmp_lg_u32 s{S_W}, 0"); P("s_cbranch_scc1 L_k1_nononce")
        P("s_load_dwordx2 s[74:75], s[0:1], 88"); P("s_memrealtime s[76:77]"); P("s_waitcnt lgkmcnt(0)")
        P("s_or_b32 s76, s76, 1"); P("v_mov_b32 v234, s76"); P("v_mov_b32 v235, 0")
        P("s_mov_b32 s76, s74"); P("s_mov_b32 s77, s75"); P("s_mov_b32 s78, 256"); P("s_mov_b32 s79, 0x20000")
        P(f"v_cmp_eq_u32 vcc, 0, {L}"); P("s_and_saveexec_b64 s[74:75], vcc")
        P("buffer_store_dword v234, v235, s[76:79], 0 offen sc1")
        P("s_waitcnt vmcnt(0)")
        P("s_mov_b64 exec, s[74:75]")
        P.label("L_k1_nononce")
    P.c("phase 1 prologue")
    run(dma_x(0)); run(dma_w(0)); stamp("pro"); run(dma_w(1)); run(dma_x(1)); stamp("pro")
    kstep = int(opts.get("k0step", 5)); vstep = int(opts.get("v0step", 8))
    stamp("p1")
    vq.wait(P, "W0"); stamp("pro"); P("s_barrier")
    stamp("p1"); stamp("pro")
    run(rd_stage(0))
    NS = 18
    pf_cache = {}
    for st in range(NS):
        P.c(f"Q-proj step {st}")
        fs = st & 1
        mf = []
        for dt in range(8):
            for qt in range(5):
                a = ACC + (dt * 5 + qt) * 4
                c = "0" if st == 0 else vr(a)
                mf.append(f"v_mfma_f32_16x16x32_bf16 {vr(a)}, {ar(WF(fs, dt))}, {ar(XF(fs, qt))}, {c}")
        P("s_waitcnt lgkmcnt(0)")
        head = int(opts.get('head', 6))
        for m in mf[:head]: P(m)
        fill = []
        if st + 1 < NS:
            need_tags = [f"W{st+1}"] + ([f"X{(st+1)>>1}"] if (st + 1) % 2 == 0 else [])
            last = max(need_tags, key=lambda tg: max([i for i, x in enumerate(vq.q) if x == tg], default=-1))
            if not opts.get("nowait1"): vq.wait(P, last)
        if not opts.get("nobar1"): P("s_barrier")
        dm = []
        if st == 0: dm += dma_w(2)
        if st + 3 < NS and not opts.get("nodmaW"): dm += dma_w(st + 3)
        if st % 2 == 1 and (st + 3) // 2 < 9 and not opts.get("nodmaX"): dm += dma_x((st + 3) // 2)
        if not opts.get("nokv1"):
            sched = opts.get("pf", "5:K0a,5:K0b,8:V0a,8:V0b")
            for ev in sched.split(","):
                es, what = ev.split(":")
                if int(es) == st:
                    which, half = what[0], what[2]
                    key = what[:2]
                    if key not in pf_cache: pf_cache[key] = dma_kv(which, 0, SLOT_K[0] if which == "K" else SLOT_V[0])
                    atoms = pf_cache[key]
                    dm += atoms[:5] if half == "a" else atoms[5:]
            if st == 15: dm += dma_kv("K", 1, SLOT_K[1])
            if st == 17: dm += dma_kv("V", 1, SLOT_V[1])
        rd = rd_stage(st + 1) if st + 1 < NS else []
        if opts.get("nord1"): rd = []
        fill = []
        nd, nr = len(dm), len(rd)
        di = ri = 0
        rr = int(opts.get("rratio", 2))
        while di < nd or ri < nr:
            for _ in range(rr):
                if ri < nr: fill.append(rd[ri]); ri += 1
            if di < nd: fill.append(dm[di]); di += 1
        interleave(P, mf[head:], fill)
        if st in (0, 1, 2, 8, 17): stamp("p1")
        if st in tuple(int(x) for x in opts.get("p2steps", "8.9.10.11.12.13.14").split(".")): stamp("p2")
        if st in tuple(int(x) for x in opts.get("clksteps", "9.14").split(".")): stamp("clk")
    stamp(); stamp("all3")
    if opts.get("p1only"):
        P("s_waitcnt vmcnt(0)"); P("s_endpgm")
    P.c("Q conversion")
    for dt in range(8): P(f"v_xor_b32 v{V_WA[dt]}, {dt*32}, {T[8]}") if dt else P(f"v_mov_b32 v{V_WA[0]}, {T[8]}")
    for qt in range(5):
        for s in range(4):
            A = ACC + ((2 * s) * 5 + qt) * 4; B = ACC + ((2 * s + 1) * 5 + qt) * 4
            for r in range(4): P(f"v_mul_f32 v{A+r}, s{S_C}, v{A+r}")
            for r in range(4): P(f"v_mul_f32 v{B+r}, s{S_C}, v{B+r}")
            P(f"v_cvt_pk_bf16_f32 v{A}, v{A}, v{A+1}"); P(f"v_cvt_pk_bf16_f32 v{A+1}, v{A+2}, v{A+3}")
            P(f"v_cvt_pk_bf16_f32 v{B}, v{B}, v{B+1}"); P(f"v_cvt_pk_bf16_f32 v{B+1}, v{B+2}, v{B+3}")
    for qt in range(5):
        for s in range(4):
            A = ACC + ((2 * s) * 5 + qt) * 4; B = ACC + ((2 * s + 1) * 5 + qt) * 4
            P(f"v_permlane32_swap_b32 v{A}, v{B}"); P(f"v_permlane32_swap_b32 v{A+1}, v{B+1}")
    for qt in range(5):
        for s in range(4):
            A = ACC + ((2 * s) * 5 + qt) * 4; B = ACC + ((2 * s + 1) * 5 + qt) * 4
            P(f"v_permlane16_swap_b32 v{A}, v{B}"); P(f"v_permlane16_swap_b32 v{A+1}, v{B+1}")
    for qt in range(5):
        for s in range(4):
            A = ACC + ((2 * s) * 5 + qt) * 4; B = ACC + ((2 * s + 1) * 5 + qt) * 4
            q = Qa(qt, s)
            P(f"v_accvgpr_write_b32 a{q}, v{A}"); P(f"v_accvgpr_write_b32 a{q+1}, v{A+1}")
            P(f"v_accvgpr_write_b32 a{q+2}, v{B}"); P(f"v_accvgpr_write_b32 a{q+3}, v{B+1}")
    for r in range(4): P(f"v_mov_b32 v{ONES+r}, 0x3f803f80")

    def rd_K(slot):
        return [f"ds_read_b128 {vr(KF + (kt*4+s)*4)}, v{V_KA[s]} offset:{slot + kt*4096}" for kt in range(2) for s in range(4)]
    def rd_V(slot):
        out = []
        for dt in range(8):
            out.append(f"ds_read_b64_tr_b16 {vr(VF + dt*4, 2)}, v{V_WA[dt]} offset:{slot}")
            out.append(f"ds_read_b64_tr_b16 {vr(VF + dt*4 + 2, 2)}, v{V_WA[dt]} offset:{slot + 4096}")
        return out
    def qk_mfmas(qt, first):
        out = []
        for kt in range(2):
            for s in range(4):
                d = S(kt, qt)
                c = (("0" if first else vr(NM + qt * 4)) if s == 0 else vr(d))
                out.append(f"v_mfma_f32_16x16x32_bf16 {vr(d)}, {vr(KF + (kt*4+s)*4)}, {ar(Qa(qt, s))}, {c}")
        return out
    def softmax_ops(qt, orreg, first_or):
        e = ET + (qt & 1) * 8
        out = []
        for kt in range(2):
            for r in range(4): out.append(f"v_exp_f32 v{e + kt*4 + r}, v{S(kt, qt) + r}")
            out.append(f"v_cvt_pk_bf16_f32 v{P0 + qt*4 + kt*2}, v{e + kt*4}, v{e + kt*4 + 1}")
            out.append(f"v_cvt_pk_bf16_f32 v{P0 + qt*4 + kt*2 + 1}, v{e + kt*4 + 2}, v{e + kt*4 + 3}")
        o = [out[0], out[1], out[2], out[3], out[6], out[4], out[7], out[5], out[8], out[9], out[10], out[11]]
        p = P0 + qt * 4
        if first_or:
            o.append(f"v_or3_b32 {orreg}, v{p}, v{p+1}, v{p+2}"); o.append(f"v_or_b32 {orreg}, {orreg}, v{p+3}")
        else:
            o.append(f"v_or3_b32 {orreg}, {orreg}, v{p}, v{p+1}"); o.append(f"v_or3_b32 {orreg}, {orreg}, v{p+2}, v{p+3}")
        return o
    def colmax(qt, dst, tmp):
        a = S(0, qt); b = S(1, qt)
        P(f"v_max3_f32 {dst}, v{a}, v{a+1}, v{a+2}"); P(f"v_max3_f32 {tmp}, v{a+3}, v{b}, v{b+1}")
        P(f"v_max3_f32 {dst}, {dst}, v{b+2}, v{b+3}"); P(f"v_max_f32 {dst}, {dst}, {tmp}")
        P(f"v_mov_b32 {tmp}, {dst}"); P(f"v_permlane32_swap_b32 {dst}, {tmp}"); P(f"v_max_f32 {dst}, {dst}, {tmp}")
        P(f"v_mov_b32 {tmp}, {dst}"); P(f"v_permlane16_swap_b32 {dst}, {tmp}"); P(f"v_max_f32 {dst}, {dst}, {tmp}")
    ORR = T[0]
    def merge(a, b):
        out = []; i = j = 0
        while i < len(a) or j < len(b):
            if i < len(a) and (j >= len(b) or i * max(len(b), 1) <= j * len(a)): out.append(a[i]); i += 1
            else: out.append(b[j]); j += 1
        return out
    osc_ = ' sc1' if (opts.get('merge') or opts.get('g2')) else opts.get('ost', '').replace('_', ' ')
    def epi_ops(qt):
        out = [f"v_rcp_f32 v{NM + qt}, v{LL + qt*4}"]
        for s_ in range(4):
            e = S0 + ((qt * 4 + s_) % 4) * 8
            out.append(f"s_add_u32 s{t[0]}, s{S_OB}, {s_*81920 + qt*1024}")
            for r in range(4): out.append(f"v_accvgpr_read_b32 v{e+r}, a{Oa(2*s_, qt)+r}")
            for r in range(4): out.append(f"v_accvgpr_read_b32 v{e+4+r}, a{Oa(2*s_+1, qt)+r}")
            for r in range(8): out.append(f"v_mul_f32 v{e+r}, v{e+r}, v{NM+qt}")
            out += [f"v_cvt_pk_bf16_f32 v{e}, v{e}, v{e+1}", f"v_cvt_pk_bf16_f32 v{e+1}, v{e+2}, v{e+3}",
                    f"v_cvt_pk_bf16_f32 v{e+2}, v{e+4}, v{e+5}", f"v_cvt_pk_bf16_f32 v{e+3}, v{e+6}, v{e+7}",
                    f"buffer_store_dwordx4 {vr(e)}, {T[3]}, s[{S_SRDO}:{S_SRDO+3}], s{t[0]} offen{osc_}"]
        return out
    def block(i, first=False, issue=True, last=False, shared=False, lab=""):
        par = i & 1
        dk = dma_kv_half if shared else dma_kv
        pre = "A" if shared else ""
        P.c(f"block {i} QK {pre}")
        P("s_waitcnt lgkmcnt(0)")
        if not shared and opts.get("blkbar"): P("s_barrier")
        if shared:
            vq.wait(P, f"V{i}"); P("s_barrier")
            if i == 1:
                for x in range(4): P(f"v_subrev_u32 v{V_KA[x]}, s{S_AOFF}, v{V_KA[x]}")
        dmK = dk("K", i + 2, SLOT_K[par]) if issue else []
        rdV = rd_V(SLOT_V[par])
        waitV = (lambda: None) if shared else (lambda: vq.wait(P, f"V{i}"))
        nk = 3 if shared else 6
        for qt in range(5):
            fill = []
            if not first and qt > 0: fill += softmax_ops(qt - 1, ORR, qt == 1)
            if qt == 0: fill += dmK[:nk]
            if qt == 1: fill = merge(fill, dmK[nk:])
            if qt == 3: fill = [waitV] + merge(fill, rdV[:8])
            if qt == 4: fill = merge(fill, rdV[8:])
            interleave(P, qk_mfmas(qt, first), fill)
        if first:
            P.c("first block: establish the running max")
            for qt in range(5):
                colmax(qt, T[1], T[2])
                P(f"v_add_f32 {T[1]}, 0x{f2u(BIAS):x}, {T[1]}")
                for r in range(4): P(f"v_sub_f32 v{NM + qt*4 + r}, 0, {T[1]}")
                for kt in range(2):
                    for r in range(4): P(f"v_sub_f32 v{S(kt, qt) + r}, v{S(kt, qt) + r}, {T[1]}")
                run(softmax_ops(qt, ORR, qt == 0))
        else:
            run(softmax_ops(4, ORR, False))
            P(f"v_and_b32 {ORR}, s{S_MASK}, {ORR}")
            P(f"v_cmp_ne_u32 vcc, 0, {ORR}")
            lb = f"L_ok_{pre}{lab}{i}"
            P(f"s_cbranch_vccz {lb}")
            P(f"s_call_b64 s[{S_RET}:{S_RET+1}], L_rescale")
            P.label(lb)
        P.c(f"block {i} PV {pre}")
        P("s_waitcnt lgkmcnt(0)")
        if not shared and opts.get("blkbar") == "2": P("s_barrier")
        if shared:
            if not last: vq.wait(P, f"K{i+1}")
            P("s_barrier")
            if i == 1:
                for x in range(8): P(f"v_subrev_u32 v{V_WA[x]}, s{S_AOFF}, v{V_WA[x]}")
        dmV = dk("V", i + 2, SLOT_V[par]) if issue else []
        mf = []
        for qt in range(5):
            for dt in range(8):
                o = Oa(dt, qt)
                c = "0" if first else ar(o)
                mf.append(f"v_mfma_f32_16x16x32_bf16 {ar(o)}, {vr(VF + dt*4)}, {vr(P0 + qt*4)}, {c}")
            c = "0" if first else vr(LL + qt * 4)
            mf.append(f"v_mfma_f32_16x16x32_bf16 {vr(LL + qt*4)}, {vr(ONES)}, {vr(P0 + qt*4)}, {c}")
        fill = list(dmV)
        tail = []
        if not last:
            tail = ([] if shared else [lambda: vq.wait(P, f"K{i+1}")]) + rd_K(SLOT_K[(i + 1) & 1])
        if last and opts.get("epiov"):
            P(f"v_lshlrev_b32 {T[3]}, 4, {L}")
            for qt in range(5):
                grp = mf[qt*9:(qt+1)*9]
                if qt == 0:
                    for m in grp: P(m)
                else:
                    P(grp[0]); P(grp[1])
                    interleave(P, grp[2:], epi_ops(qt - 1))
            run(epi_ops(4))
        else:
            interleave(P, mf[:27], fill)
            interleave(P, mf[27:], tail)

    def shape(q, base): return [(x[0], int(x[1:]) - base) for x in q]
    def attention(shared):
        pre = "A" if shared else ""
        stamp()
        vq.wait(P, "K0"); run(rd_K(SLOT_K[0]))
        if shared:
            P(f"s_and_b32 s{t[0]}, s{S_W}, 1"); P(f"s_mul_i32 s{S_AOFF}, s{t[0]}, {WREG}"); P(f"s_lshl_b32 s{t[0]}, s{t[0]}, 12")
            P(f"s_sub_u32 s{S_WBH}, s{S_WB}, s{S_AOFF}"); P(f"s_add_u32 s{S_WBH}, s{S_WBH}, s{t[0]}")
            P(f"s_add_u32 s{S_KOFF}, s{S_KOFF}, s{t[0]}"); P(f"s_add_u32 s{S_VOFF}, s{S_VOFF}, s{t[0]}")
        nthr = int(opts.get("bthr", 0)) if not shared else 0
        if nthr: thr[0] = int(opts.get("thrn", 3))
        block(0, first=True, shared=shared)
        stamp()
        block(1, shared=shared)
        stamp()
        P(f"s_mov_b32 s{S_CNT}, 0")
        qsave = [x for x in vq.q]
        if nthr:
            P.label(f"L_attn_loopT")
            block(2, shared=shared, lab="T"); block(3, shared=shared, lab="T")
            assert shape(qsave, 2) == shape(vq.q, 4), (qsave, vq.q)
            P(f"s_add_u32 s{S_CNT}, s{S_CNT}, 1"); P(f"s_cmp_lt_u32 s{S_CNT}, {nthr}"); P(f"s_cbranch_scc1 L_attn_loopT")
            vq.q = list(qsave); thr[0] = None
        if opts.get("align"): P.raw(".p2align 6")
        P.label(f"L_attn_loop{pre}")
        block(2, shared=shared); block(3, shared=shared)
        assert shape(qsave, 2) == shape(vq.q, 4), (qsave, vq.q)
        P(f"s_add_u32 s{S_CNT}, s{S_CNT}, 1"); P(f"s_cmp_lt_u32 s{S_CNT}, 6"); P(f"s_cbranch_scc1 L_attn_loop{pre}")
        vq.q = [f"{x[0]}{int(x[1:]) - 4 + 14}" for x in vq.q]
        if opts.get("g2"):
            P("s_load_dwordx2 s[74:75], s[0:1], 88")
            P(f"v_mov_b32 v235, 0")
            P("s_waitcnt lgkmcnt(0)")
            P("s_mov_b32 s76, s74"); P("s_mov_b32 s77, s75"); P("s_mov_b32 s78, 256"); P("s_mov_b32 s79, 0x20000")
            if opts.get("tickets"):
                P(f"s_cmp_lg_u32 s{S_W}, 0"); P(f"s_cbranch_scc1 L_nn_o{pre}")
                P("buffer_load_dword v234, v235, s[76:79], 0 offen sc1"); P(f"s_branch L_nn_e{pre}")
                P.label(f"L_nn_o{pre}")
                P(f"buffer_load_dword v234, v235, s[{S_SRDX}:{S_SRDX+3}], 0 offen")
                P.label(f"L_nn_e{pre}")
            else:
                P("buffer_load_dword v234, v235, s[76:79], 0 offen sc1")
            vq.push("T0")
        block(14, issue=False, shared=shared)
        if opts.get("tickets"):
            P(f"s_and_b32 s{t[2]}, s2, 7"); P(f"s_lshl_b32 s{t[2]}, s{t[2]}, 2"); P(f"s_add_u32 s{t[2]}, s{t[2]}, 128")
            P(f"v_mov_b32 v237, s{t[2]}"); P("v_mov_b32 v236, 1")
            P(f"s_cmp_lg_u32 s{S_W}, 0"); P(f"s_cbranch_scc1 L_tk_o{pre}")
            P(f"v_cmp_eq_u32 vcc, 0, {L}"); P("s_and_saveexec_b64 s[74:75], vcc")
            P("buffer_atomic_add v236, v237, s[76:79], 0 offen sc0")
            P("s_mov_b64 exec, s[74:75]"); P(f"s_branch L_tk_e{pre}")
            P.label(f"L_tk_o{pre}")
            P(f"buffer_load_dword v236, v235, s[{S_SRDX}:{S_SRDX+3}], 0 offen")
            P.label(f"L_tk_e{pre}")
            vq.push("T1")
        block(15, issue=False, last=True, shared=shared)
    if opts.get("shareA"):
        q_at = list(vq.q); n_at = nst[0]
        P(f"s_cmp_eq_u32 s{S_P}, 0"); P("s_cbranch_scc1 L_attn_A")
        attention(False)
        P("s_branch L_epi")
        P.label("L_attn_A")
        vq.q = list(q_at); nst[0] = n_at
        attention(True)
        P.label("L_epi")
    else:
        attention(False)
    stamp(); stamp("clk"); stamp("all3")
    P.c("epilogue")
    if not opts.get("epiov"):
        P(f"v_lshlrev_b32 {T[3]}, 4, {L}")
        for qt in range(5): run(epi_ops(qt))
    if stamps and nst[0] > 0 and opts.get("stgrp") != "all":
        P("s_waitcnt vmcnt(0)")
        stamp()
        P("s_waitcnt lgkmcnt(0)")
        for i in range(8): P(f"v_mov_b32 v{4+i}, s{80+2*min(i, nst[0]-1)}")
        P(f"s_lshl_b32 s{t[0]}, s2, 2"); P(f"s_add_u32 s{t[0]}, s{t[0]}, s{S_W}"); P(f"s_lshl_b32 s{t[0]}, s{t[0]}, 5")
        P(f"s_add_u32 s76, s72, 0x4000000"); P("s_addc_u32 s77, s73, 0"); P("s_mov_b32 s78, 0x100000"); P("s_mov_b32 s79, 0x20000")
        P(f"v_mov_b32 v12, s{t[0]}"); P(f"v_cmp_eq_u32 vcc, 0, {L}"); P("s_and_saveexec_b64 s[74:75], vcc")
        P("buffer_store_dwordx4 v[4:7], v12, s[76:79], 0 offen")
        P("buffer_store_dwordx4 v[8:11], v12, s[76:79], 0 offen offset:16")
        P("s_mov_b64 exec, s[74:75]")
    if opts.get("g8"):
        import g8
        g8.gen_g8(P, opts, {"P": S_P, "B": S_B, "H": S_H})
    elif opts.get("g2"):
        import g2
        g2.gen_g2(P, opts, {"P": S_P, "B": S_B, "H": S_H})
    elif opts.get("merge"):
        import k2
        P(f"s_lshl_b32 s{t[0]}, s{S_P}, 5"); P(f"s_lshr_b32 s{t[1]}, s{S_B}, 1"); P(f"s_lshl_b32 s{t[1]}, s{t[1]}, 2"); P(f"s_add_u32 s{t[0]}, s{t[0]}, s{t[1]}")
        P(f"s_lshr_b32 s{t[1]}, s{S_H}, 3"); P(f"s_add_u32 s{t[0]}, s{t[0]}, s{t[1]}"); P(f"s_lshl_b32 s{t[0]}, s{t[0]}, 2")
        P("s_load_dwordx2 s[70:71], s[0:1], 88")
        P("s_waitcnt vmcnt(0) lgkmcnt(0)"); P("s_barrier")
        P(f"s_cmp_lg_u32 s{S_W}, 0"); P("s_cbranch_scc1 L_k1_sig")
        P("s_mov_b32 s20, s70"); P("s_mov_b32 s21, s71"); P("s_mov_b32 s22, 256"); P("s_mov_b32 s23, 0x20000")
        P(f"v_mov_b32 {T[1]}, s{t[0]}"); P(f"v_mov_b32 {T[2]}, 1")
        P(f"v_cmp_eq_u32 vcc, 0, {L}"); P("s_and_saveexec_b64 s[74:75], vcc")
        P(f"buffer_atomic_add {T[2]}, {T[1]}, s[20:23], 0 offen")
        P("s_mov_b64 exec, s[74:75]")
        P.label("L_k1_sig")
        k2.gen_k2(P, opts, merged=True)
    P.label("L_k1_done")
    P("s_endpgm")
    P.label("L_rescale")
    P("s_nop 7"); P("s_nop 7")
    for qt in range(5):
        colmax(qt, T[1], T[2])
        P(f"v_add_f32 {T[1]}, 0x{f2u(BIAS):x}, {T[1]}"); P(f"v_max_f32 {T[1]}, 0, {T[1]}")
        P(f"v_sub_f32 {T[2]}, 0, {T[1]}"); P(f"v_exp_f32 {T[2]}, {T[2]}")
        for r in range(4): P(f"v_sub_f32 v{NM + qt*4 + r}, v{NM + qt*4 + r}, {T[1]}")
        for kt in range(2):
            for r in range(4): P(f"v_sub_f32 v{S(kt, qt) + r}, v{S(kt, qt) + r}, {T[1]}")
        for r in range(4): P(f"v_mul_f32 v{LL + qt*4 + r}, v{LL + qt*4 + r}, {T[2]}")
        for dt in range(8):
            for r in range(4): P(f"v_accvgpr_read_b32 v{ET + r}, a{Oa(dt, qt) + r}")
            for r in range(4): P(f"v_mul_f32 v{ET + r}, v{ET + r}, {T[2]}")
            for r in range(4): P(f"v_accvgpr_write_b32 a{Oa(dt, qt) + r}, v{ET + r}")
        run(softmax_ops(qt, ORR, True))
    P("s_nop 7")
    P(f"s_setpc_b64 s[{S_RET}:{S_RET+1}]")

def desc(name, vgpr, accum, sgpr=100):
    return f""".section .rodata,"a"
.p2align 6
.amdhsa_kernel {name}
  .amdhsa_next_free_vgpr {vgpr}
  .amdhsa_next_free_sgpr {sgpr}
  .amdhsa_accum_offset {accum}
  .amdhsa_group_segment_fixed_size 0
  .amdhsa_kernarg_size 104
  .amdhsa_user_sgpr_count 2
  .amdhsa_user_sgpr_kernarg_segment_ptr 1
  .amdhsa_system_sgpr_workgroup_id_x 1
.end_amdhsa_kernel
"""
```
